```python
import torch

def _softmax(x, axis=-1):
    return torch.softmax(x, dim=axis)
def _gelu(x):
    return torch.nn.functional.gelu(x, approximate="tanh")
def _silu(x):
    return torch.nn.functional.silu(x)
def _sigmoid(x):
    return torch.sigmoid(x)
def _layernorm(x, axis=-1, eps=1e-5):
    m = x.mean(dim=axis, keepdim=True)
    v = x.var(dim=axis, keepdim=True, unbiased=False)
    return (x - m) / torch.sqrt(v + eps)
def _scatter_add(tgt, idx, src, axis=0):
    return tgt.clone().index_add_(axis, idx, src)
def _segment_sum(src, seg, n):
    out = torch.zeros((n,) + src.shape[1:], dtype=src.dtype)
    return out.index_add_(0, seg, src)
def _pad(x, pw):
    flat = tuple(v for pair in reversed(pw) for v in pair)
    return torch.nn.functional.pad(x, flat)

kernel_name = 'gated_mix__sliding_block__dense_activation_mish__prompt'

def setup_inputs():

    _w = (lambda a: (lambda t: t.to(torch.bfloat16) if t.is_floating_point() else t)(torch.as_tensor(a)))
    def _A_setup():
        B, S, D = 1, 2048, 512
        return {
            "x": _w((lambda *s: torch.randn(*s, dtype=torch.bfloat16) * 0.05)(B, S, D)),
            "wqkv": _w((lambda *s: torch.randn(*s, dtype=torch.bfloat16) * 0.8)(D, 3 * D)),
            "wo": _w((lambda *s: torch.randn(*s, dtype=torch.bfloat16) * 0.05)(D, D)),
        }
    _A_in = _A_setup()

    def _B_setup():
        B, S, D, F = 1, 2048, 512, 1376
        return {
            "x": _w((lambda *s: torch.randn(*s, dtype=torch.bfloat16) * 0.05)(B, S, D)),
            "w1": _w((lambda *s: torch.randn(*s, dtype=torch.bfloat16) * 12.8)(D, F) * (D ** -0.5)),
            "b1": _w((lambda *s: torch.randn(*s, dtype=torch.bfloat16) * 0.8)(F)),
            "w2": _w((lambda *s: torch.randn(*s, dtype=torch.bfloat16) * 0.8)(F, D) * (F ** -0.5)),
        }
    _B_in = _B_setup()

    return {
        "A_x": _A_in["x"],
        "A_wqkv": _A_in["wqkv"],
        "A_wo": _A_in["wo"],
        "B_x": _B_in["x"],
        "B_w1": _B_in["w1"],
        "B_b1": _B_in["b1"],
        "B_w2": _B_in["w2"],
        "gate_w": _w((lambda *s: torch.randn(*s, dtype=torch.bfloat16) * 0.05)(512) * 16.0),
    }

def reference(A_x, A_wqkv, A_wo, B_x, B_w1, B_b1, B_w2, gate_w):
    def _A_ref(x, wqkv, wo):
        B, S, D = x.shape
        H = 32; Dh = D // H; W = 256
        qkv = (lambda x, *d: x.permute(*d))((x @ wqkv).reshape(B, S, 3, H, Dh), 2, 0, 3, 1, 4)
        q, k, v = qkv[0], qkv[1], qkv[2]
        scores = torch.einsum("bhqd,bhkd->bhqk", q, k) * (Dh ** -0.5)
        idx = torch.arange(S)
        mask = (idx[:, None] - idx[None, :] >= 0) & (idx[:, None] - idx[None, :] < W)
        scores = torch.where(mask[None, None], scores, -1e9)
        p = _softmax(scores, axis=-1)
        o = torch.einsum("bhqk,bhkd->bhqd", p, v)
        return (lambda x, *d: x.permute(*d))(o, 0, 2, 1, 3).reshape(B, S, D) @ wo

    def _B_ref(x, w1, b1, w2):
        h = torch.einsum("bsd,df->bsf", x, w1) + b1
        sp = torch.log1p(torch.exp(-torch.abs(h))) + torch.where(h > 0, h, torch.zeros_like(h))
        act = h * torch.tanh(sp)
        return torch.einsum("bsf,fd->bsd", act, w2)

    x = A_x
    g = _sigmoid((x * gate_w).sum(-1, keepdims=True))
    a = _A_ref(x, A_wqkv, A_wo)
    b = _B_ref(x, B_w1, B_b1, B_w2)
    return g * a + (1 - g) * b
```

```python
import re

REG_RE = re.compile(r"^(-?)(abs\()?\|?([vas])(\d+|\[(\d+):(\d+)\])\|?\)?$")

TRANS = ("v_exp_f32", "v_log_f32", "v_rcp_f32", "v_rsq_f32", "v_sqrt_f32", "v_sin_f32", "v_cos_f32",
         "v_exp_f16", "v_rcp_iflag_f32")


def parse_reg(tok):
    tok = tok.strip()
    if tok in ("vcc", "vcc_lo", "vcc_hi"):
        return {("s", "vcc")}
    if tok in ("exec", "exec_lo", "exec_hi"):
        return {("s", "exec")}
    if tok == "m0":
        return {("s", "m0")}
    m = REG_RE.match(tok)
    if not m:
        return set()
    k = m.group(3)
    if m.group(5) is not None:
        return {(k, i) for i in range(int(m.group(5)), int(m.group(6)) + 1)}
    return {(k, int(m.group(4)))}


def split_ops(s):
    out, depth, cur = [], 0, ""
    for ch in s:
        if ch in "[(":
            depth += 1
        if ch in "])":
            depth -= 1
        if ch == "," and depth == 0:
            out.append(cur.strip())
            cur = ""
        else:
            cur += ch
    if cur.strip():
        out.append(cur.strip())
    return out


class Inst:
    __slots__ = ("text", "op", "wr", "rd", "cls", "passes", "srcc", "srcab", "label", "ws", "lds_dma", "wide_store")

    def __init__(self, text):
        self.text = text
        self.label = None
        t = text.split(";")[0].strip()
        self.wr, self.rd = set(), set()
        self.cls = "other"
        self.passes = 0
        self.srcc, self.srcab = set(), set()
        self.ws = 1
        self.lds_dma = False
        self.wide_store = set()
        if t.endswith(":"):
            self.label = t[:-1]
            self.op = "label"
            self.ws = 0
            return
        if t.startswith(".") or not t:
            self.op = "dir"
            self.ws = 0
            return
        parts = t.split(None, 1)
        op = parts[0]
        self.op = op
        rest = parts[1] if len(parts) > 1 else ""
        ops = split_ops(rest)
        mods = ""
        if ops:
            sp = ops[-1].split(None, 1)
            if len(sp) > 1 and not ops[-1].startswith("abs("):
                ops[-1] = sp[0]
                mods = sp[1]
        regs = [parse_reg(o) for o in ops]
        base = re.sub(r"_e(32|64)$", "", op)
        if op == "s_nop":
            self.ws = int(ops[0], 0) + 1
            self.cls = "salu"
        elif base.startswith("v_mfma"):
            self.cls = "mfma"
            self.passes = 8 if "32x32x16" in base else 4
            assert "32x32x16" in base or "16x16x32" in base, op
            self.wr = regs[0]
            self.srcab = regs[1] | regs[2]
            self.srcc = regs[3]
            self.rd = self.srcab | self.srcc
        elif base.startswith("v_"):
            self.cls = "trans" if base in TRANS else "valu"
            if base.startswith("v_permlane") and "swap" in base:
                self.wr = regs[0] | regs[1]
                self.rd = regs[0] | regs[1]
                self.cls = "permlane"
            elif base.startswith("v_cmp"):
                self.wr = set(regs[0])
                if base.startswith("v_cmpx"):
                    self.wr |= {("s", "exec")}
                for r in regs[1:]:
                    self.rd |= r
            elif base in ("v_add_co_u32", "v_sub_co_u32", "v_addc_co_u32", "v_subb_co_u32"):
                self.wr = regs[0] | regs[1]
                for r in regs[2:]:
                    self.rd |= r
            else:
                self.wr = set(regs[0])
                for r in regs[1:]:
                    self.rd |= r
                if base in ("v_fmac_f32", "v_dot2c_f32_bf16", "v_pk_fmac_f16", "v_writelane_b32"):
                    self.rd |= regs[0]
                if base in ("v_readfirstlane_b32", "v_readlane_b32"):
                    self.cls = "readlane"
            if "row_" in mods or "quad_perm" in mods or "dpp" in op:
                self.cls = "dpp"
        elif base.startswith("ds_"):
            self.cls = "ds"
            if base.startswith("ds_read") or "permute" in base or "swizzle" in base:
                self.wr = set(regs[0])
                for r in regs[1:]:
                    self.rd |= r
            else:
                for r in regs:
                    self.rd |= r
        elif base.startswith("buffer_") or base.startswith("global_"):
            self.cls = "vmem"
            is_lds = re.search(r"\blds\b", mods) is not None or "load_lds" in base
            if "load" in base and not is_lds:
                self.wr = set(regs[0])
                for r in regs[1:]:
                    self.rd |= r
            elif "atomic" in base and re.search(r"\bsc0\b", mods):
                if base.startswith("buffer_"):
                    self.wr = set(regs[0])
                    for r in regs:
                        self.rd |= r
                else:
                    self.wr = set(regs[0])
                    for r in regs[1:]:
                        self.rd |= r
            else:
                for r in regs:
                    self.rd |= r
                if is_lds:
                    self.lds_dma = True
                    self.rd |= {("s", "m0")}
                if "store" in base and ("x4" in base or "x3" in base):
                    self.wide_store = regs[0] if base.startswith("buffer_") else regs[1]
        elif base.startswith("s_"):
            self.cls = "salu"
            if base.startswith(("s_load", "s_buffer_load", "s_memtime", "s_memrealtime", "s_atomic")):
                self.cls = "smem"
                self.wr = set(regs[0])
                for r in regs[1:]:
                    self.rd |= r
            elif base.startswith(("s_cmp", "s_cbranch", "s_branch", "s_waitcnt", "s_barrier", "s_endpgm", "s_setprio",
                                  "s_sleep", "s_bitcmp", "s_setpc")):
                for r in regs:
                    self.rd |= r
                if base.startswith(("s_cbranch", "s_branch", "s_setpc")):
                    self.cls = "branch"
            else:
                if regs:
                    self.wr = set(regs[0])
                for r in regs[1:]:
                    self.rd |= r
                if "saveexec" in base:
                    self.wr |= {("s", "exec")}
        else:
            raise ValueError("unknown instruction: " + text)


VALU_LIKE = ("valu", "trans", "permlane", "readlane", "dpp")


def is_vreg(r):
    return r[0] in ("v", "a")


def need(prod, cons):
    n = 0
    pv = prod.cls in VALU_LIKE
    cv = cons.cls in VALU_LIKE
    if prod.cls == "mfma":
        p = prod.passes
        if cons.cls == "mfma":
            if prod.wr & cons.srcab:
                n = max(n, p + 4)
            if prod.wr & cons.srcc:
                if not (prod.wr == cons.srcc and prod.passes == cons.passes):
                    n = max(n, p + 2)
            if prod.wr & cons.wr and not (prod.wr == cons.srcc):
                n = max(n, p + 2) if prod.passes != cons.passes else n
        elif cv or cons.cls in ("vmem", "ds"):
            if prod.wr & (cons.rd | cons.wr):
                n = max(n, p + 4)
        if cv and (prod.srcc & cons.wr):
            n = max(n, p - 1)
    if pv:
        vw = {r for r in prod.wr if is_vreg(r)}
        sw = {r for r in prod.wr if r[0] == "s"}
        if cons.cls == "mfma" and vw & cons.rd:
            n = max(n, 2)
        if cons.cls in ("permlane", "dpp") and vw & cons.rd:
            n = max(n, 2)
        if cons.cls == "readlane" and vw & cons.rd:
            n = max(n, 1)
        if prod.cls == "trans" and cv and cons.cls != "trans" and vw & cons.rd:
            n = max(n, 1)
        if prod.cls == "trans" and cons.cls in ("vmem", "ds") and vw & cons.rd:
            n = max(n, 1)
        if prod.op.startswith("v_dot") and vw & (cons.rd | cons.wr):
            if not (cons.op == prod.op and cons.op.startswith("v_dot2c") and cons.wr == prod.wr):
                n = max(n, 3)
        if sw:
            implicit = set()
            opb = cons.op
            if cv and (opb.startswith("v_cndmask") or opb.startswith("v_addc") or opb.startswith("v_subb")):
                implicit = {("s", "vcc")}
            if cv and sw & (cons.rd | implicit):
                n = max(n, 4 if cons.cls == "readlane" else 2)
            if cons.cls == "vmem" and sw & cons.rd:
                n = max(n, 5)
            if ("s", "exec") in sw:
                if cons.cls in ("mfma", "readlane", "permlane"):
                    n = max(n, 4)
                if cons.cls == "dpp":
                    n = max(n, 5)
            if cons.cls in ("salu", "smem", "branch") and sw & cons.rd:
                n = max(n, 1)
    if prod.cls == "salu" and ("s", "m0") in prod.wr and cons.lds_dma:
        n = max(n, 1)
    if prod.wide_store and (prod.wide_store & cons.wr):
        n = max(n, 2 if cv else 1)
    return n


MAXWS = 20


class Asm:
    def __init__(self):
        self.items = []

    def __call__(self, text):
        for line in text.split("\n"):
            if line.strip():
                self.items.append(Inst(line.strip()))

    def raw(self, text):
        i = Inst("")
        i.text = text
        self.items.append(i)

    def label(self, name):
        self.items.append(Inst(name + ":"))

    def finalize(self, verbose=False):
        items = self.items
        labels = {it.label: i for i, it in enumerate(items) if it.label}
        br = {}
        for i, it in enumerate(items):
            if it.cls == "branch":
                tgt = it.text.split(";")[0].split()[-1]
                if tgt in labels:
                    br.setdefault(tgt, []).append(i)
        pad = [0] * len(items)
        changed = True
        rounds = 0
        while changed:
            changed = False
            rounds += 1
            for i, it in enumerate(items):
                if it.ws == 0:
                    continue
                req = self._required(i, items, pad, br)
                if req > 0:
                    pad[i] += req
                    changed = True
            assert rounds < 50
        out = []
        npad = 0
        for i, it in enumerate(items):
            p = pad[i]
            npad += p
            while p > 0:
                k = min(p, 16)
                out.append(f"    s_nop {k-1}")
                p -= k
            if it.label:
                out.append(it.text)
            elif it.op == "dir":
                out.append(it.text)
            else:
                out.append("    " + it.text)
        if verbose:
            print("hazard pad states inserted:", npad)
        return "\n".join(out) + "\n"

    def _required(self, i, items, pad, br):
        cons = items[i]
        worst = 0
        stack = [(i - 1, pad[i])]
        seen = set()
        while stack:
            j, dist = stack.pop()
            while j >= 0 and dist < MAXWS:
                it = items[j]
                if it.label:
                    for b in br.get(it.label, []):
                        key = (b, dist)
                        if key not in seen:
                            seen.add(key)
                            stack.append((b, dist))
                    j -= 1
                    continue
                if it.ws == 0:
                    j -= 1
                    continue
                if it.op in ("s_branch", "s_endpgm", "s_setpc_b64") and (j, dist) not in seen:
                    break
                n = need(it, cons)
                if n > dist:
                    worst = max(worst, n - dist)
                dist += it.ws + pad[j]
                j -= 1
        return worst
```

```python
import sys, struct, math
sys.path.insert(0, "dev")
from asmlib import Asm

NAME = "gated_mix__sliding_block__dense_activation_mish__prompt"
QF, KF, VF, OF, AF, GO = 0, 2 << 20, 4 << 20, 6 << 20, 8 << 20, 14 << 20
WS_BYTES = 16 << 20
LOG2E = 1.4426950408889634


def f32(x):
    return "0x%08x" % struct.unpack("<I", struct.pack("<f", x))[0]


def vr(b, n):
    return f"v[{b}:{b+n-1}]"


def ar(b, n):
    return f"a[{b}:{b+n-1}]"


def srd(a, d, base, nbytes):
    a(f"s_mov_b32 s{d}, s{base}")
    a(f"s_and_b32 s{d+1}, s{base+1}, 0xffff")
    a(f"s_mov_b32 s{d+2}, {nbytes}")
    a(f"s_mov_b32 s{d+3}, 0x20000")


def kd(name, vgpr, accum, sgpr=96):
    return f"""
.amdhsa_kernel {name}
  .amdhsa_next_free_vgpr {vgpr}
  .amdhsa_next_free_sgpr {sgpr}
  .amdhsa_accum_offset {accum}
  .amdhsa_group_segment_fixed_size 0
  .amdhsa_kernarg_size 88
  .amdhsa_user_sgpr_count 2
  .amdhsa_user_sgpr_kernarg_segment_ptr 1
  .amdhsa_system_sgpr_workgroup_id_x 1
.end_amdhsa_kernel
"""


def head(a, name):
    a.raw(f".globl {name}\n.p2align 8\n.type {name},@function")
    a.label(name)


def gen_k1(a):
    head(a, "k1_kernel")
    SX, SW, SWS, SB, SG = 20, 24, 28, 32, 36
    STG = 40960
    VD = 1
    VXA = 11
    VWA = 15
    T = 17
    XF = 20
    WF = 28
    BF = 52
    ACC = 64
    E = 160
    a(f"""
    s_cmp_ge_u32 s2, 256
    s_cbranch_scc1 K1_END
    s_load_dwordx4 s[4:7], s[0:1], 0
    s_load_dwordx4 s[8:11], s[0:1], 32
    s_load_dwordx2 s[12:13], s[0:1], 56
    s_load_dwordx2 s[14:15], s[0:1], 80
    v_lshrrev_b32 v1, 6, v0
    v_and_b32 v0, 63, v0
    v_readfirstlane_b32 s19, v1
    s_and_b32 s52, s2, 7
    s_lshr_b32 s53, s2, 3
    s_lshr_b32 s16, s52, 2
    s_lshl_b32 s16, s16, 3
    s_lshr_b32 s54, s53, 2
    s_add_u32 s16, s16, s54
    s_bfe_u32 s17, s53, 0x10001
    s_and_b32 s18, s52, 3
    s_lshl_b32 s18, s18, 1
    s_and_b32 s54, s53, 1
    s_add_u32 s18, s18, s54
    s_mul_i32 s44, s18, 5
    s_min_u32 s54, s18, 3
    s_add_u32 s44, s44, s54
    s_cmp_lt_u32 s18, 3
    s_cselect_b32 s45, 6, 5
    s_lshl_b32 s55, s44, 6
    s_lshl_b32 s56, s18, 7
    s_movk_i32 s57, 3072
    s_movk_i32 s58, 1024
    s_cmp_eq_u32 s17, 0
    s_cselect_b32 s40, s57, 2752
    s_cselect_b32 s41, s56, s55
    s_cselect_b32 s58, s58, 128
    s_cselect_b32 s45, 6, s45
    s_add_u32 s42, s41, s58
    s_add_u32 s43, s42, s58
    s_lshl_b32 s48, s40, 6
    s_lshl_b32 s57, s16, 17
    s_lshl_b32 s58, s19, 15
    s_add_u32 s57, s57, s58
    v_lshrrev_b32 v{T}, 3, v0
    v_and_b32 v{T+1}, 7, v0
    v_lshrrev_b32 v{T+2}, 4, v0
    v_xor_b32 v{VD}, v{T+1}, v{T+2}
    v_lshlrev_b32 v{VD}, 4, v{VD}
    v_lshl_add_u32 v{VD}, v{T}, 10, v{VD}
    v_add_u32 v{VD}, s57, v{VD}
    v_add_u32 v{VD+1}, 8192, v{VD}
    v_xor_b32 v{VD+1}, 64, v{VD+1}
    v_add_u32 v{VD+2}, 16384, v{VD}
    v_add_u32 v{VD+3}, 16384, v{VD+1}
    v_and_b32 v{T+2}, 1, v{T+2}
    v_lshlrev_b32 v{T+2}, 2, v{T+2}
    v_xor_b32 v{T+1}, v{T+1}, v{T+2}
    s_lshl_b32 s58, s19, 4
    v_add_u32 v{T}, s58, v{T}
    v_mul_lo_u32 v{T}, v{T}, s40
    v_lshl_add_u32 v{T}, v{T+1}, 4, v{T}
    s_lshl_b32 s58, s40, 3
    """)
    for sg in range(3):
        a(f"v_add_u32 v{VD+4+2*sg}, s{41+sg}, v{T}")
        a(f"v_add_u32 v{VD+5+2*sg}, s58, v{VD+4+2*sg}")
    a(f"""
    s_cmp_eq_u32 s45, 5
    s_cselect_b32 s58, 4, 8
    v_cmp_le_u32 vcc, s58, v{T+1}
    v_mov_b32 v{T+2}, 0x40000000
    v_cndmask_b32 v{VD+8}, v{VD+8}, v{T+2}, vcc
    v_cndmask_b32 v{VD+9}, v{VD+9}, v{T+2}, vcc
    s_waitcnt lgkmcnt(0)
    """)
    srd(a, SX, 4, 2048 * 1024)
    a(f"""
    s_cmp_eq_u32 s17, 0
    s_cselect_b32 s{SW}, s6, s8
    s_cselect_b32 s{SW+1}, s7, s9
    s_and_b32 s{SW+1}, s{SW+1}, 0xffff
    s_lshl_b32 s{SW+2}, s40, 9
    s_mov_b32 s{SW+3}, 0x20000
    """)
    srd(a, SWS, 14, WS_BYTES)
    srd(a, SB, 10, 2752)
    a(f"""
    s_cmp_eq_u32 s17, 0
    s_cselect_b32 s{SB+2}, 0, s{SB+2}
    """)
    srd(a, SG, 12, 1024)
    a(f"""
    v_and_b32 v{T}, 31, v0
    v_lshlrev_b32 v{T}, 1, v{T}
    """)
    for kb in range(6):
        a(f"buffer_load_ushort v{E+4*kb}, v{T}, s[{SB}:{SB+3}], s55 offen offset:{64*kb}")
    a(f"""
    v_lshlrev_b32 v{T+1}, 4, v0
    s_lshl_b32 s58, s17, 3
    s_add_u32 s58, s58, s18
    s_lshl_b32 s58, s58, 2
    s_add_u32 s58, s58, s19
    s_lshl_b32 s58, s58, 1
    s_lshl_b32 s59, s16, 7
    s_add_u32 s59, s59, s58
    s_lshl_b32 s58, s59, 10
    buffer_load_dwordx4 {vr(E+32,4)}, v{T+1}, s[{SG}:{SG+3}], 0 offen
    buffer_load_dwordx4 {vr(E+36,4)}, v{T+1}, s[{SX}:{SX+3}], s58 offen
    buffer_load_dwordx4 {vr(E+40,4)}, v{T+1}, s[{SX}:{SX+3}], s58 offen offset:1024
    s_mul_i32 s49, s19, 10240
    s_mov_b32 s46, 0
    s_mov_b32 s47, 0
    """)

    def dma_list(chunk):
        st = chunk % 4
        out = []
        for i in range(10):
            g = [f"s_add_u32 m0, s49, {st*STG + i*1024}"]
            if i < 4:
                g.append(f"buffer_load_dwordx4 v{VD+i}, s[{SX}:{SX+3}], s46 offen lds")
            else:
                g.append(f"buffer_load_dwordx4 v{VD+i}, s[{SW}:{SW+3}], s47 offen lds")
            if i == 9:
                g.append("s_add_u32 s46, s46, 128")
                g.append("s_add_u32 s47, s47, s48")
            out.append(g)
        return out

    for c in range(4):
        for g in dma_list(c):
            for t in g:
                a(t)
    a(f"""
    v_and_b32 v{T}, 31, v0
    v_lshrrev_b32 v{T+1}, 5, v0
    v_bfe_u32 v{T+2}, v0, 1, 3
    v_xor_b32 v{T+2}, v{T+2}, v{T+1}
    v_lshlrev_b32 v{T+2}, 4, v{T+2}
    v_lshl_add_u32 v{VXA}, v{T}, 7, v{T+2}
    v_add_u32 v{VXA}, s49, v{VXA}
    v_xor_b32 v{VXA+1}, 32, v{VXA}
    v_xor_b32 v{VXA+2}, 64, v{VXA}
    v_xor_b32 v{VXA+3}, 96, v{VXA}
    v_lshlrev_b32 v{VWA}, 10, v{T+1}
    v_bfe_u32 v{T}, v0, 2, 2
    v_lshl_add_u32 v{VWA}, v{T}, 7, v{VWA}
    v_bfe_u32 v{T}, v0, 3, 1
    v_lshl_add_u32 v{VWA}, v{T}, 6, v{VWA}
    v_bfe_u32 v{T}, v0, 4, 1
    v_lshl_add_u32 v{VWA}, v{T}, 5, v{VWA}
    v_and_b32 v{T}, 3, v0
    v_lshl_add_u32 v{VWA}, v{T}, 3, v{VWA}
    v_xor_b32 v{VWA+1}, 64, v{VWA}
    """)
    for kb in range(6):
        for i in range(1, 4):
            a(f"v_mov_b32 v{E+4*kb+i}, 0")
    a(f"""
    v_mov_b32 v{E+25}, 0
    v_mov_b32 v{E+26}, 0
    v_mov_b32 v{E+27}, 0
    v_mov_b32 v{E+28}, 0x3f80
    v_cmp_gt_u32 vcc, 32, v0
    v_cndmask_b32 v{E+24}, 0, v{E+28}, vcc
    v_mov_b32 v{E+44}, 0
    v_mov_b32 v{E+45}, 0
    s_waitcnt vmcnt(40)
    """)
    for kb in range(6):
        a(f"v_mfma_f32_32x32x16_bf16 {vr(ACC+16*kb,16)}, {vr(E+4*kb,4)}, {vr(E+24,4)}, 0")
    for i in range(4):
        a(f"v_dot2c_f32_bf16 v{E+44}, v{E+36+i}, v{E+32+i}")
        a(f"v_dot2c_f32_bf16 v{E+45}, v{E+40+i}, v{E+32+i}")
    for dpp in ("row_shr:1", "row_shr:2", "row_shr:4", "row_shr:8", "row_bcast:15 row_mask:0xa", "row_bcast:31 row_mask:0xc"):
        for r in (44, 45):
            a(f"v_add_f32_dpp v{E+r}, v{E+r}, v{E+r} {dpp}")
    for r in (44, 45):
        a(f"v_mul_f32 v{E+r}, {f32(-LOG2E)}, v{E+r}")
        a(f"v_exp_f32 v{E+r}, v{E+r}")
        a(f"v_add_f32 v{E+r}, 1.0, v{E+r}")
        a(f"v_rcp_f32 v{E+r}, v{E+r}")
    a(f"""
    s_lshl_b32 s59, s59, 2
    s_add_u32 s59, s59, {GO}
    v_mov_b32 v{T}, 0
    s_mov_b64 exec, 0x8000000000000000
    """.replace("s_mov_b64 exec, 0x8000000000000000", "s_mov_b32 exec_lo, 0\n s_mov_b32 exec_hi, 0x80000000"))
    a(f"""
    buffer_store_dwordx2 {vr(E+44,2)}, v{T}, s[{SWS}:{SWS+3}], s59 offen
    s_mov_b64 exec, -1
    s_cmp_eq_u32 s17, 0
    s_cbranch_scc0 K1_FFN
    """)

    def reads(s, k, xb):
        out = []
        if k == 0:
            out.append(f"ds_read_b128 {vr(XF+4*xb,4)}, v{VXA+s}")
        sg, ch = k >> 1, k & 1
        for j in range(2):
            out.append(f"ds_read_b64_tr_b16 {vr(WF+4*k+2*j,2)}, v{VWA+ch} offset:{s*10240+4096+sg*2048+j*512}")
        return out

    def mainloop(role):
        a("s_waitcnt vmcnt(31)")
        a("s_barrier")
        for k in range(6):
            for t in reads(0, k, 0):
                a(t)
        xb = 0
        for c in range(8):
            for s in range(4):
                dm = []
                if s == 3 and c < 7:
                    nst, cst = (c + 1) % 4, c % 4
                    d = (nst - cst) * STG
                    for r in range(VXA, VWA + 2):
                        if d > 0:
                            a(f"v_add_u32 v{r}, {d}, v{r}")
                        else:
                            a(f"v_subrev_u32 v{r}, {-d}, v{r}")
                    n = 20 if c <= 4 else (10 if c == 5 else 0)
                    if c <= 2:
                        n += 1
                    a(f"s_waitcnt vmcnt({n}) lgkmcnt(0)")
                    a("s_barrier")
                p = c if s == 3 else c - 1
                ph = (s + 1) % 4
                if 0 <= p <= 3:
                    dl = dma_list(p + 4)
                    lo, hi = [(0, 3), (3, 5), (5, 8), (8, 10)][ph]
                    dm = dl[lo:hi]
                last = (c == 7 and s == 3)
                ns = (s + 1) % 4
                for k in range(6):
                    a(f"s_waitcnt lgkmcnt({10 if k == 0 else 11})" if not last else f"s_waitcnt lgkmcnt({10-2*k})")
                    W, X = vr(WF + 4 * k, 4), vr(XF + 4 * xb, 4)
                    A, B = (X, W) if (role == 0 and k >= 4) else (W, X)
                    g = None
                    if k % 2 == 1 and dm:
                        g = dm.pop(0)
                        a(g[0])
                    a(f"v_mfma_f32_32x32x16_bf16 {vr(ACC+16*k,16)}, {A}, {B}, {vr(ACC+16*k,16)}")
                    if g:
                        for t in g[1:]:
                            a(t)
                    if not last:
                        for t in reads(ns, k, xb ^ 1):
                            a(t)
                assert not dm
                xb ^= 1

    mainloop(0)
    SC = 0.25 * LOG2E
    a(f"""
    v_mov_b32 v{E}, {f32(SC)}
    v_mov_b32 v{E+1}, {f32(SC)}
    v_lshlrev_b32 v{T}, 4, v0
    v_and_b32 v{T+1}, 15, v0
    v_lshlrev_b32 v{T+1}, 4, v{T+1}
    v_lshrrev_b32 v{T+2}, 5, v0
    v_lshl_add_u32 v{T+1}, v{T+2}, 8, v{T+1}
    v_bfe_u32 v{T+2}, v0, 4, 1
    v_lshl_add_u32 v{T+1}, v{T+2}, 16, v{T+1}
    s_lshl_b32 s52, s16, 2
    s_add_u32 s52, s52, s19
    s_lshl_b32 s52, s52, 10
    s_lshl_b32 s53, s18, 18
    s_add_u32 s52, s52, s53
    """)
    tb = 0
    for kb in range(6):
        for hh in range(2):
            src = ACC + 16 * kb + 8 * hh
            dst = E + 4 + 4 * (tb % 4)
            tb += 1
            if kb < 2:
                for i in range(4):
                    a(f"v_pk_mul_f32 {vr(src+2*i,2)}, {vr(src+2*i,2)}, {vr(E,2)}")
            for i in range(4):
                a(f"v_cvt_pk_bf16_f32 v{dst+i}, v{src+2*i}, v{src+2*i+1}")
            if kb < 4:
                base = (QF if kb < 2 else KF) + (2 * (kb & 1) + hh) * 65536
                a(f"s_add_u32 s53, s52, {base}")
                a(f"buffer_store_dwordx4 {vr(dst,4)}, v{T}, s[{SWS}:{SWS+3}], s53 offen")
            else:
                base = VF + (2 * (kb & 1)) * 65536
                a(f"s_add_u32 s53, s52, {base}")
                a(f"buffer_store_dwordx4 {vr(dst,4)}, v{T+1}, s[{SWS}:{SWS+3}], s53 offen offset:{hh*512}")
    a("s_endpgm")
    a.label("K1_FFN")
    mainloop(1)
    CL, C2, C30 = E, E + 2, E + 4
    a(f"""
    v_mov_b32 v{CL}, {f32(LOG2E)}
    v_mov_b32 v{CL+1}, {f32(LOG2E)}
    v_mov_b32 v{C2}, 2.0
    v_mov_b32 v{C2+1}, 2.0
    v_mov_b32 v{C30}, {f32(30.0)}
    v_lshlrev_b32 v{T}, 4, v0
    s_lshl_b32 s52, s16, 2
    s_add_u32 s52, s52, s19
    s_mul_i32 s52, s52, {86*1024}
    s_lshl_b32 s53, s44, 11
    s_add_u32 s52, s52, s53
    s_add_u32 s52, s52, {AF}
    """)
    for kb in range(6):
        if kb == 5:
            a("s_cmp_eq_u32 s45, 5")
            a("s_cbranch_scc1 K1_END")
        for t in range(2):
            src = ACC + 16 * kb + 8 * t
            U = E + 8 + 24 * (t & 1)
            N = U + 8
            D = U + 16
            for i in range(4):
                a(f"v_pk_mul_f32 {vr(U+2*i,2)}, {vr(src+2*i,2)}, {vr(CL,2)}")
            for i in range(8):
                a(f"v_min_f32 v{U+i}, v{U+i}, v{C30}")
            for i in range(8):
                a(f"v_exp_f32 v{U+i}, v{U+i}")
            for i in range(4):
                a(f"v_pk_add_f32 {vr(N+2*i,2)}, {vr(U+2*i,2)}, {vr(C2,2)}")
            for i in range(4):
                a(f"v_pk_mul_f32 {vr(N+2*i,2)}, {vr(N+2*i,2)}, {vr(U+2*i,2)}")
            for i in range(4):
                a(f"v_pk_add_f32 {vr(U+2*i,2)}, {vr(N+2*i,2)}, {vr(C2,2)}")
            for i in range(8):
                a(f"v_rcp_f32 v{U+i}, v{U+i}")
            for i in range(4):
                a(f"v_pk_mul_f32 {vr(N+2*i,2)}, {vr(N+2*i,2)}, {vr(src+2*i,2)}")
            for i in range(4):
                a(f"v_pk_mul_f32 {vr(N+2*i,2)}, {vr(N+2*i,2)}, {vr(U+2*i,2)}")
            for i in range(4):
                a(f"v_cvt_pk_bf16_f32 v{D+i}, v{N+2*i}, v{N+2*i+1}")
            off = (2 * kb + t) * 1024
            a(f"s_add_u32 s53, s52, {off}")
            a(f"buffer_store_dwordx4 {vr(D,4)}, v{T}, s[{SWS}:{SWS+3}], s53 offen")
    a.label("K1_END")
    a("s_endpgm")
    return kd("k1_kernel", 256, 256)


def gen_k2(a):
    head(a, "k2_kernel")
    SWS = 8
    T = 1
    Q = 8
    MD, MF = 16, 32
    S = 48
    NM = 96
    CD = 128
    O = 192
    P = 224
    M = 240
    KA = 0
    VA = 40
    a(f"""
    s_cmp_ge_u32 s2, 256
    s_cbranch_scc1 K2_END
    s_load_dwordx2 s[4:5], s[0:1], 80
    v_lshrrev_b32 v1, 6, v0
    v_and_b32 v0, 63, v0
    v_readfirstlane_b32 s19, v1
    s_and_b32 s52, s2, 7
    s_lshr_b32 s53, s2, 3
    s_lshr_b32 s16, s52, 2
    s_lshl_b32 s16, s16, 4
    s_lshr_b32 s54, s53, 1
    s_add_u32 s16, s16, s54
    s_and_b32 s18, s52, 3
    s_lshl_b32 s18, s18, 1
    s_and_b32 s54, s53, 1
    s_add_u32 s18, s18, s54
    s_lshl_b32 s18, s18, 2
    s_add_u32 s18, s18, s19
    """)
    a(f"""
    s_lshl_b32 s20, s18, 16
    s_lshl_b32 s21, s16, 11
    s_add_u32 s20, s20, s21
    s_add_u32 s22, s20, {KF - 8192}
    s_add_u32 s23, s22, 4096
    s_add_u32 s24, s22, 8192
    s_add_u32 s25, s20, {VF - 8192}
    s_add_u32 s26, s25, 4096
    s_add_u32 s27, s25, 8192
    v_lshlrev_b32 v{T}, 4, v0
    v_and_b32 v{T+1}, 15, v0
    v_lshlrev_b32 v{T+1}, 4, v{T+1}
    v_lshrrev_b32 v{T+2}, 5, v0
    v_lshl_add_u32 v{T+1}, v{T+2}, 8, v{T+1}
    s_mov_b32 s28, 0x3f803f80
    """)
    for i in range(80):
        a(f"v_accvgpr_write_b32 a{VA+i}, s28")
    a("s_waitcnt lgkmcnt(0)")
    srd(a, SWS, 4, WS_BYTES)
    a(f"buffer_load_dwordx4 {vr(Q,4)}, v{T}, s[{SWS}:{SWS+3}], s20 offen")
    a(f"buffer_load_dwordx4 {vr(Q+4,4)}, v{T}, s[{SWS}:{SWS+3}], s20 offen offset:1024")
    for i in range(9, -1, -1):
        a(f"buffer_load_dwordx4 {ar(KA+4*i,4)}, v{T}, s[{SWS}:{SWS+3}], s{22+i//4} offen offset:{(i%4)*1024}")
    a("s_mov_b32 exec_lo, 0xffff")
    a("s_mov_b32 exec_hi, 0xffff")
    for i in range(9, -1, -1):
        for t in range(2):
            a(f"buffer_load_dwordx4 {ar(VA+8*i+4*t,4)}, v{T+1}, s[{SWS}:{SWS+3}], s{25+i//4} offen offset:{(i%4)*1024+t*512}")
    a("s_mov_b64 exec, -1")
    a(f"""
    v_and_b32 v{T+3}, 31, v0
    v_lshlrev_b32 v{T+2}, 2, v{T+2}
    v_sub_u32 v{T+3}, v{T+3}, v{T+2}
    v_mov_b32 v{T+4}, {f32(-1e30)}
    """)
    for r in range(16):
        kk = 8 * (r >> 2) + (r & 3)
        a(f"v_cmp_le_i32 vcc, {kk}, v{T+3}")
        a(f"v_cndmask_b32 v{MD+r}, v{T+4}, 0, vcc" if False else f"v_cndmask_b32_e64 v{MD+r}, v{T+4}, 0, vcc")
        a(f"v_cndmask_b32_e64 v{MF+r}, 0, v{T+4}, vcc")
    a(f"v_mov_b32 v{M}, v{T+4}")
    a(f"v_mov_b32 v{M+1}, v{T+4}")
    for i in range(32):
        a(f"v_mov_b32 v{O+i}, 0")
    units = []
    for i in range(9, -1, -1):
        for u in (1, 0):
            rel = i - u
            if rel < 0 or rel > 8:
                continue
            kind = "d" if rel == 8 else ("f" if rel == 0 else "n")
            units.append((u, i, kind))
    nU = len(units)
    exits = {2: 0, 6: 1, 10: 2, 14: 3}
    def smfma(n, cfun):
        u, i, kind = units[n]
        a(f"v_mfma_f32_32x32x16_bf16 {vr(S+16*(n%3),16)}, {ar(KA+4*i,4)}, {vr(Q+4*u,4)}, {cfun(u, kind)}")

    def c1(u, kind):
        return {"n": "0", "d": vr(MD, 16), "f": vr(MF, 16)}[kind]

    def kwait(n):
        u, i, kind = units[n]
        a(f"s_waitcnt vmcnt({20 + i})")

    kwait(0)
    smfma(0, c1)
    kwait(1)
    smfma(1, c1)
    for n in range(nU):
        if n + 2 < nU:
            kwait(n + 2)
            smfma(n + 2, c1)
        u = units[n][0]
        b = S + 16 * (n % 3)
        for j in range(8):
            a(f"v_max3_f32 v{M+u}, v{b+2*j}, v{b+2*j+1}, v{M+u}")
        if n in exits:
            a(f"s_cmp_le_u32 s16, {exits[n]}")
            a("s_cbranch_scc1 K2_P1DONE")
    a.label("K2_P1DONE")
    for u in range(2):
        a(f"v_mov_b32 v{M+2+u}, v{M+u}")
    for u in range(2):
        a(f"v_permlane32_swap_b32 v{M+u}, v{M+2+u}")
    for u in range(2):
        a(f"v_max_f32 v{M+u}, v{M+u}, v{M+2+u}")
    for u in range(2):
        a(f"v_sub_f32 v{NM+16*u}, 0, v{M+u}")
        a(f"v_sub_f32 v{NM+16*u+1}, 0, v{M+u}")
    for u in range(2):
        for j in range(1, 8):
            a(f"v_pk_mov_b32 {vr(NM+16*u+2*j,2)}, {vr(NM+16*u,2)}, {vr(NM+16*u,2)}")
        for j in range(8):
            a(f"v_pk_add_f32 {vr(CD+32*u+2*j,2)}, {vr(MD+2*j,2)}, {vr(NM+16*u,2)}")
            a(f"v_pk_add_f32 {vr(CD+32*u+16+2*j,2)}, {vr(MF+2*j,2)}, {vr(NM+16*u,2)}")

    def c2(u, kind):
        return {"n": vr(NM + 16 * u, 16), "d": vr(CD + 32 * u, 16), "f": vr(CD + 32 * u + 16, 16)}[kind]

    a("s_waitcnt vmcnt(0)")
    smfma(0, c2)
    smfma(1, c2)
    for n in range(nU):
        u, i, kind = units[n]
        b = S + 16 * (n % 3)
        p = P + 8 * (n % 2)
        if n + 2 < nU:
            smfma(n + 2, c2)
        for t in range(2):
            for j in range(8):
                a(f"v_exp_f32 v{b+8*t+j}, v{b+8*t+j}")
            for j in range(4):
                a(f"v_cvt_pk_bf16_f32 v{p+4*t+j}, v{b+8*t+2*j}, v{b+8*t+2*j+1}")
            a(f"v_mfma_f32_32x32x16_bf16 {vr(O+16*u,16)}, {ar(VA+8*i+4*t,4)}, {vr(p+4*t,4)}, {vr(O+16*u,16)}")
        if n in exits:
            a(f"s_cmp_le_u32 s16, {exits[n]}")
            a("s_cbranch_scc1 K2_P2DONE")
    a.label("K2_P2DONE")
    a(f"""
    s_lshl_b32 s20, s16, 16
    s_lshl_b32 s21, s18, 10
    s_add_u32 s20, s20, s21
    s_add_u32 s20, s20, {OF}
    s_add_u32 s21, s20, 32768
    """)
    for u in range(2):
        a(f"v_rcp_f32 v{M+u}, v{O+16*u+8}")
    for u in range(2):
        for j in range(8):
            a(f"v_mul_f32 v{O+16*u+j}, v{O+16*u+j}, v{M+u}")
        for j in range(4):
            a(f"v_cvt_pk_bf16_f32 v{P+4*u+j}, v{O+16*u+2*j}, v{O+16*u+2*j+1}")
        a(f"buffer_store_dwordx4 {vr(P+4*u,4)}, v{T}, s[{SWS}:{SWS+3}], s{20+u} offen")
    a.label("K2_END")
    a("s_endpgm")
    return kd("k2_kernel", 256 + 120, 256)


def gen_k3(a):
    head(a, "k3_kernel")
    SW, SWS, SO = 20, 24, 28
    D = 8
    T = 1
    VA0, VA1 = 8, 9
    VD0, VD1 = 10, 11
    VWA = 12
    G = 14
    WF = 16
    AFR = 32
    ACC = 96
    E = 160
    a(f"""
    s_cmp_ge_u32 s2, 256
    s_cbranch_scc1 K3_END
    s_load_dwordx2 s[4:5], s[0:1], 16
    s_load_dwordx2 s[6:7], s[0:1], 48
    s_load_dwordx2 s[8:9], s[0:1], 64
    s_load_dwordx2 s[10:11], s[0:1], 80
    v_lshrrev_b32 v1, 6, v0
    v_and_b32 v0, 63, v0
    v_readfirstlane_b32 s19, v1
    s_and_b32 s52, s2, 7
    s_lshr_b32 s53, s2, 3
    s_lshl_b32 s16, s52, 2
    s_lshr_b32 s54, s53, 3
    s_add_u32 s16, s16, s54
    s_and_b32 s17, s53, 7
    """)
    a(f"""
    s_sub_u32 s32, s19, 1
    s_lshl_b32 s32, s32, 5
    s_cmp_eq_u32 s19, 0
    s_cselect_b32 s32, 0, s32
    s_cselect_b32 s33, 32, 86
    s_mov_b32 s34, {AF}
    s_cselect_b32 s34, {OF}, s34
    s_cmp_eq_u32 s19, 3
    s_cselect_b32 s35, 22, 32
    s_lshl_b32 s36, s16, 1
    s_mul_i32 s36, s36, s33
    s_add_u32 s36, s36, s32
    s_lshl_b32 s36, s36, 10
    s_add_u32 s36, s36, s34
    s_lshl_b32 s37, s33, 10
    v_lshlrev_b32 v{VA0}, 4, v0
    v_add_u32 v{VA1}, s37, v{VA0}
    s_lshl_b32 s38, s32, 14
    s_lshl_b32 s39, s17, 7
    s_add_u32 s38, s38, s39
    v_lshrrev_b32 v{T}, 3, v0
    v_and_b32 v{T+1}, 7, v0
    v_bfe_u32 v{T+2}, v0, 4, 1
    v_lshlrev_b32 v{T+2}, 2, v{T+2}
    v_xor_b32 v{T+1}, v{T+1}, v{T+2}
    v_lshlrev_b32 v{VD0}, 4, v{T+1}
    v_lshl_add_u32 v{VD0}, v{T}, 10, v{VD0}
    v_add_u32 v{VD1}, 8192, v{VD0}
    s_lshl_b32 s40, s19, 14
    v_lshrrev_b32 v{T}, 5, v0
    v_lshlrev_b32 v{VWA}, 9, v{T}
    v_bfe_u32 v{T}, v0, 2, 2
    v_lshl_add_u32 v{VWA}, v{T}, 7, v{VWA}
    v_bfe_u32 v{T}, v0, 3, 1
    v_lshl_add_u32 v{VWA}, v{T}, 6, v{VWA}
    v_bfe_u32 v{T}, v0, 4, 1
    v_lshl_add_u32 v{VWA}, v{T}, 5, v{VWA}
    v_and_b32 v{T}, 3, v0
    v_lshl_add_u32 v{VWA}, v{T}, 3, v{VWA}
    v_add_u32 v{VWA}, s40, v{VWA}
    v_xor_b32 v{VWA+1}, 64, v{VWA}
    v_and_b32 v{T}, 31, v0
    v_lshlrev_b32 v{T}, 2, v{T}
    s_lshl_b32 s41, s16, 8
    s_add_u32 s41, s41, {GO}
    s_waitcnt lgkmcnt(0)
    s_cmp_eq_u32 s19, 0
    s_cselect_b32 s{SW}, s4, s6
    s_cselect_b32 s{SW+1}, s5, s7
    s_and_b32 s{SW+1}, s{SW+1}, 0xffff
    s_lshl_b32 s{SW+2}, s33, 14
    s_mov_b32 s{SW+3}, 0x20000
    """)
    srd(a, SWS, 10, WS_BYTES)
    srd(a, SO, 8, 2048 * 1024)
    a(f"buffer_load_dword v{G}, v{T}, s[{SWS}:{SWS+3}], s41 offen")
    a(f"buffer_load_dword v{G+1}, v{T}, s[{SWS}:{SWS+3}], s41 offen offset:128")
    a("s_mov_b32 s42, 0")

    def issue(slot):
        a(f"""
        s_cmp_lt_u32 s42, s35
        s_cselect_b32 s43, s36, 0x40000000
        s_cselect_b32 s44, s38, 0x40000000
        s_add_u32 m0, s40, {slot*2048}
        buffer_load_dwordx4 {vr(AFR+8*slot,4)}, v{VA0}, s[{SWS}:{SWS+3}], s43 offen
        buffer_load_dwordx4 v{VD0}, s[{SW}:{SW+3}], s44 offen lds
        s_add_u32 m0, s40, {slot*2048+1024}
        buffer_load_dwordx4 {vr(AFR+8*slot+4,4)}, v{VA1}, s[{SWS}:{SWS+3}], s43 offen
        buffer_load_dwordx4 v{VD1}, s[{SW}:{SW+3}], s44 offen lds
        s_add_u32 s42, s42, 1
        s_add_u32 s36, s36, 1024
        s_add_u32 s38, s38, 16384
        """)

    def wreads(slot, b):
        for nb in range(2):
            for j in range(2):
                a(f"ds_read_b64_tr_b16 {vr(WF+8*b+4*nb+2*j,2)}, v{VWA+nb} offset:{slot*2048+j*1024}")

    for s in range(D):
        issue(s)
    for i in range(64):
        a(f"v_mov_b32 v{ACC+i}, 0")
    a("s_mov_b32 s45, 0")
    a(f"s_waitcnt vmcnt({4*(D-1)})")
    wreads(0, 0)
    a.label("K3_LOOP")
    for s in range(D):
        b = s & 1
        a(f"s_waitcnt vmcnt({4*(D-2)})")
        wreads((s + 1) % D, b ^ 1)
        a("s_waitcnt lgkmcnt(4)")
        for nb in range(2):
            for tb in range(2):
                acc = ACC + 16 * (2 * nb + tb)
                a(f"v_mfma_f32_32x32x16_bf16 {vr(acc,16)}, {vr(WF+8*b+4*nb,4)}, {vr(AFR+8*s+4*tb,4)}, {vr(acc,16)}")
        issue(s)
        if s & 1:
            a("s_add_u32 s45, s45, 2")
            a("s_cmp_ge_u32 s45, s35")
            if s == D - 1:
                a("s_cbranch_scc0 K3_LOOP")
            else:
                a("s_cbranch_scc1 K3_DONE")
    a.label("K3_DONE")
    a("s_waitcnt vmcnt(0) lgkmcnt(0)")
    a(f"""
    s_cmp_eq_u32 s19, 0
    s_cbranch_scc1 K3_G
    v_sub_f32 v{G}, 1.0, v{G}
    v_sub_f32 v{G+1}, 1.0, v{G+1}
    """)
    a.label("K3_G")
    for tl in range(4):
        for i in range(16):
            a(f"v_mul_f32 v{ACC+16*tl+i}, v{ACC+16*tl+i}, v{G+(tl&1)}")
    a("s_barrier")
    a(f"""
    s_lshl_b32 s46, s19, 12
    v_add_u32 v{T}, s46, v{VA0}
    s_lshl_b32 s46, s19, 14
    v_add_u32 v{T+1}, s46, v{VA0}
    """)
    for tl in range(4):
        for q in range(4):
            a(f"ds_write_b128 v{T}, {vr(ACC+16*tl+4*q,4)} offset:{tl*16384+q*1024}")
    a("s_waitcnt lgkmcnt(0)")
    a("s_barrier")
    for w in range(4):
        for q in range(4):
            a(f"ds_read_b128 {vr(ACC+16*w+4*q,4)}, v{T+1} offset:{w*4096+q*1024}")
    a(f"""
    s_and_b32 s46, s19, 1
    s_lshl_b32 s46, s46, 15
    s_lshl_b32 s47, s16, 16
    s_add_u32 s46, s46, s47
    s_lshr_b32 s47, s19, 1
    s_lshl_b32 s47, s47, 6
    s_add_u32 s46, s46, s47
    s_add_u32 s46, s46, s39
    v_and_b32 v{T+2}, 31, v0
    v_lshlrev_b32 v{T+2}, 10, v{T+2}
    v_lshrrev_b32 v{T+3}, 5, v0
    v_lshl_add_u32 v{T+2}, v{T+3}, 4, v{T+2}
    s_waitcnt lgkmcnt(0)
    """)
    for i in range(8):
        a(f"v_pk_add_f32 {vr(ACC+2*i,2)}, {vr(ACC+2*i,2)}, {vr(ACC+16+2*i,2)}")
        a(f"v_pk_add_f32 {vr(ACC+32+2*i,2)}, {vr(ACC+32+2*i,2)}, {vr(ACC+48+2*i,2)}")
    for i in range(8):
        a(f"v_pk_add_f32 {vr(ACC+2*i,2)}, {vr(ACC+2*i,2)}, {vr(ACC+32+2*i,2)}")
    for i in range(8):
        a(f"v_cvt_pk_bf16_f32 v{E+i}, v{ACC+2*i}, v{ACC+2*i+1}")
    for p in range(2):
        a(f"v_permlane32_swap_b32 v{E+4*p}, v{E+4*p+2}")
        a(f"v_permlane32_swap_b32 v{E+4*p+1}, v{E+4*p+3}")
        a(f"buffer_store_dwordx4 {vr(E+4*p,4)}, v{T+2}, s[{SO}:{SO+3}], s46 offen offset:{32*p}")
    a.label("K3_END")
    a("s_endpgm")
    return kd("k3_kernel", 256, 256)


def main():
    ref = open(f"cdna_kernels/{NAME}.s.ref").read().split("\n")
    hdr = [l for l in ref if l.startswith(";") and "@launch" not in l and "Override launch" not in l and "grid=ceil" not in l]
    a = Asm()
    a.raw("\n".join(hdr))
    a.raw("""; @launch kernel=k1_kernel grid=(256,1,1) block=(256,1,1) lds=163840
; @launch kernel=k2_kernel grid=(256,1,1) block=(256,1,1) lds=0
; @launch kernel=k3_kernel grid=(256,1,1) block=(256,1,1) lds=65536
.amdgcn_target "amdgcn-amd-amdhsa--gfx950"
.text""")
    kds = [gen_k1(a), gen_k2(a), gen_k3(a)]
    txt = a.finalize(True)
    txt += '.section .rodata,"a"\n' + "".join(".p2align 6" + k for k in kds)
    out = sys.argv[1] if len(sys.argv) > 1 else f"cdna_kernels/{NAME}.s"
    open(out, "w").write(txt)


main()
```

```python
import sys, struct, math
sys.path.insert(0, "dev")
from asmlib import Asm

NAME = "gated_mix__sliding_block__dense_activation_mish__prompt"
QF, KF, VF, OF, AF, GO = 0, 2 << 20, 4 << 20, 6 << 20, 8 << 20, 14 << 20
WS_BYTES = 16 << 20
LOG2E = 1.4426950408889634


def f32(x):
    return "0x%08x" % struct.unpack("<I", struct.pack("<f", x))[0]


def vr(b, n):
    return f"v[{b}:{b+n-1}]"


def ar(b, n):
    return f"a[{b}:{b+n-1}]"


def srd(a, d, base, nbytes):
    a(f"s_mov_b32 s{d}, s{base}")
    a(f"s_and_b32 s{d+1}, s{base+1}, 0xffff")
    a(f"s_mov_b32 s{d+2}, {nbytes}")
    a(f"s_mov_b32 s{d+3}, 0x20000")


def kd(name, vgpr, accum, sgpr=96):
    return f"""
.amdhsa_kernel {name}
  .amdhsa_next_free_vgpr {vgpr}
  .amdhsa_next_free_sgpr {sgpr}
  .amdhsa_accum_offset {accum}
  .amdhsa_group_segment_fixed_size 0
  .amdhsa_kernarg_size 88
  .amdhsa_user_sgpr_count 2
  .amdhsa_user_sgpr_kernarg_segment_ptr 1
  .amdhsa_system_sgpr_workgroup_id_x 1
.end_amdhsa_kernel
"""


STAMPS = "--stamps" in sys.argv
if STAMPS:
    sys.argv.remove("--stamps")
NEMPTY = 0
for x in list(sys.argv):
    if x.startswith("--empty="):
        NEMPTY = int(x.split("=")[1]); sys.argv.remove(x)


def stamp(a, i):
    if STAMPS:
        a(f"s_memrealtime s[{64+2*i}:{65+2*i}]")


def stamp_flush(a, base, n, wsp):
    if not STAMPS:
        return
    a(f"""
    s_waitcnt lgkmcnt(0)
    s_lshl_b32 s60, s2, 2
    s_add_u32 s60, s60, s19
    s_lshl_b32 s60, s60, 8
    s_add_u32 s60, s60, {(24 << 20) + base*8}
    v_mov_b32 v1, s60
    s_mov_b64 exec, 1
    """)
    for i in range(n):
        a(f"v_mov_b32 v2, s{64+2*i}")
        a(f"v_mov_b32 v3, s{65+2*i}")
        a(f"global_store_dwordx2 v1, v[2:3], s[{wsp}:{wsp+1}] offset:{8*i}")
    a("s_mov_b64 exec, -1")


def head(a, name):
    a.raw(f".globl {name}\n.p2align 8\n.type {name},@function")
    a.label(name)


def gen_k1(a):
    head(a, "k1_kernel")
    SX, SW, SWS, SB, SG = 20, 24, 28, 32, 36
    STG = 40960
    VD = 1
    VXA = 11
    VWA = 15
    T = 17
    XF = 20
    WF = 28
    BF = 52
    ACC = 64
    E = 160
    a(f"""
    s_cmp_ge_u32 s2, 256
    s_cbranch_scc1 K1_END
    {"s_memrealtime s[64:65]" if STAMPS else ""}
    s_load_dwordx4 s[4:7], s[0:1], 0
    s_load_dwordx4 s[8:11], s[0:1], 32
    s_load_dwordx2 s[12:13], s[0:1], 56
    s_load_dwordx2 s[14:15], s[0:1], 80
    v_lshrrev_b32 v1, 6, v0
    v_and_b32 v0, 63, v0
    v_readfirstlane_b32 s19, v1
    s_and_b32 s52, s2, 7
    s_lshr_b32 s53, s2, 3
    s_lshr_b32 s16, s52, 2
    s_lshl_b32 s16, s16, 3
    s_lshr_b32 s54, s53, 2
    s_add_u32 s16, s16, s54
    s_bfe_u32 s17, s53, 0x10001
    s_and_b32 s18, s52, 3
    s_lshl_b32 s18, s18, 1
    s_and_b32 s54, s53, 1
    s_add_u32 s18, s18, s54
    s_mul_i32 s44, s18, 5
    s_min_u32 s54, s18, 3
    s_add_u32 s44, s44, s54
    s_cmp_lt_u32 s18, 3
    s_cselect_b32 s45, 6, 5
    s_lshl_b32 s55, s44, 6
    s_lshl_b32 s56, s18, 7
    s_movk_i32 s57, 3072
    s_movk_i32 s58, 1024
    s_cmp_eq_u32 s17, 0
    s_cselect_b32 s40, s57, 2752
    s_cselect_b32 s41, s56, s55
    s_cselect_b32 s58, s58, 128
    s_cselect_b32 s45, 6, s45
    s_add_u32 s42, s41, s58
    s_add_u32 s43, s42, s58
    s_lshl_b32 s48, s40, 6
    s_lshl_b32 s57, s16, 17
    s_lshl_b32 s58, s19, 15
    s_add_u32 s57, s57, s58
    v_lshrrev_b32 v{T}, 3, v0
    v_and_b32 v{T+1}, 7, v0
    v_lshrrev_b32 v{T+2}, 4, v0
    v_xor_b32 v{VD}, v{T+1}, v{T+2}
    v_lshlrev_b32 v{VD}, 4, v{VD}
    v_lshl_add_u32 v{VD}, v{T}, 10, v{VD}
    v_add_u32 v{VD}, s57, v{VD}
    v_add_u32 v{VD+1}, 8192, v{VD}
    v_xor_b32 v{VD+1}, 64, v{VD+1}
    v_add_u32 v{VD+2}, 16384, v{VD}
    v_add_u32 v{VD+3}, 16384, v{VD+1}
    v_and_b32 v{T+2}, 1, v{T+2}
    v_lshlrev_b32 v{T+2}, 2, v{T+2}
    v_xor_b32 v{T+1}, v{T+1}, v{T+2}
    s_lshl_b32 s58, s19, 4
    v_add_u32 v{T}, s58, v{T}
    v_mul_lo_u32 v{T}, v{T}, s40
    v_lshl_add_u32 v{T}, v{T+1}, 4, v{T}
    s_lshl_b32 s58, s40, 3
    """)
    for sg in range(3):
        a(f"v_add_u32 v{VD+4+2*sg}, s{41+sg}, v{T}")
        a(f"v_add_u32 v{VD+5+2*sg}, s58, v{VD+4+2*sg}")
    a(f"""
    s_cmp_eq_u32 s45, 5
    s_cselect_b32 s58, 4, 8
    v_cmp_le_u32 vcc, s58, v{T+1}
    v_mov_b32 v{T+2}, 0x40000000
    v_cndmask_b32 v{VD+8}, v{VD+8}, v{T+2}, vcc
    v_cndmask_b32 v{VD+9}, v{VD+9}, v{T+2}, vcc
    s_waitcnt lgkmcnt(0)
    """)
    stamp(a, 1)
    srd(a, SX, 4, 2048 * 1024)
    a(f"""
    s_cmp_eq_u32 s17, 0
    s_cselect_b32 s{SW}, s6, s8
    s_cselect_b32 s{SW+1}, s7, s9
    s_and_b32 s{SW+1}, s{SW+1}, 0xffff
    s_lshl_b32 s{SW+2}, s40, 9
    s_mov_b32 s{SW+3}, 0x20000
    """)
    srd(a, SWS, 14, WS_BYTES)
    srd(a, SB, 10, 2752)
    a(f"""
    s_cmp_eq_u32 s17, 0
    s_cselect_b32 s{SB+2}, 0, s{SB+2}
    """)
    srd(a, SG, 12, 1024)
    a(f"""
    v_and_b32 v{T}, 31, v0
    v_lshlrev_b32 v{T}, 1, v{T}
    """)
    for kb in range(6):
        a(f"buffer_load_ushort v{E+4*kb}, v{T}, s[{SB}:{SB+3}], s55 offen offset:{64*kb}")
    a(f"""
    v_lshlrev_b32 v{T+1}, 4, v0
    s_lshl_b32 s58, s17, 3
    s_add_u32 s58, s58, s18
    s_lshl_b32 s58, s58, 2
    s_add_u32 s58, s58, s19
    s_lshl_b32 s58, s58, 1
    s_lshl_b32 s59, s16, 7
    s_add_u32 s59, s59, s58
    s_lshl_b32 s58, s59, 10
    buffer_load_dwordx4 {vr(E+32,4)}, v{T+1}, s[{SG}:{SG+3}], 0 offen
    buffer_load_dwordx4 {vr(E+36,4)}, v{T+1}, s[{SX}:{SX+3}], s58 offen
    buffer_load_dwordx4 {vr(E+40,4)}, v{T+1}, s[{SX}:{SX+3}], s58 offen offset:1024
    s_mul_i32 s49, s19, 10240
    s_mov_b32 s46, 0
    s_mov_b32 s47, 0
    """)

    def dma_list(chunk):
        st = chunk % 4
        out = []
        for i in range(10):
            g = [f"s_add_u32 m0, s49, {st*STG + i*1024}"]
            if i < 4:
                g.append(f"buffer_load_dwordx4 v{VD+i}, s[{SX}:{SX+3}], s46 offen lds")
            else:
                g.append(f"buffer_load_dwordx4 v{VD+i}, s[{SW}:{SW+3}], s47 offen lds")
            if i == 9:
                g.append("s_add_u32 s46, s46, 128")
                g.append("s_add_u32 s47, s47, s48")
            out.append(g)
        return out

    for c in range(4):
        for g in dma_list(c):
            for t in g:
                a(t)
    a(f"""
    v_and_b32 v{T}, 31, v0
    v_lshrrev_b32 v{T+1}, 5, v0
    v_bfe_u32 v{T+2}, v0, 1, 3
    v_xor_b32 v{T+2}, v{T+2}, v{T+1}
    v_lshlrev_b32 v{T+2}, 4, v{T+2}
    v_lshl_add_u32 v{VXA}, v{T}, 7, v{T+2}
    v_add_u32 v{VXA}, s49, v{VXA}
    v_xor_b32 v{VXA+1}, 32, v{VXA}
    v_xor_b32 v{VXA+2}, 64, v{VXA}
    v_xor_b32 v{VXA+3}, 96, v{VXA}
    v_lshlrev_b32 v{VWA}, 10, v{T+1}
    v_bfe_u32 v{T}, v0, 2, 2
    v_lshl_add_u32 v{VWA}, v{T}, 7, v{VWA}
    v_bfe_u32 v{T}, v0, 3, 1
    v_lshl_add_u32 v{VWA}, v{T}, 6, v{VWA}
    v_bfe_u32 v{T}, v0, 4, 1
    v_lshl_add_u32 v{VWA}, v{T}, 5, v{VWA}
    v_and_b32 v{T}, 3, v0
    v_lshl_add_u32 v{VWA}, v{T}, 3, v{VWA}
    v_xor_b32 v{VWA+1}, 64, v{VWA}
    """)
    for kb in range(6):
        for i in range(1, 4):
            a(f"v_mov_b32 v{E+4*kb+i}, 0")
    a(f"""
    v_mov_b32 v{E+25}, 0
    v_mov_b32 v{E+26}, 0
    v_mov_b32 v{E+27}, 0
    v_mov_b32 v{E+28}, 0x3f80
    v_cmp_gt_u32 vcc, 32, v0
    v_cndmask_b32 v{E+24}, 0, v{E+28}, vcc
    v_mov_b32 v{E+44}, 0
    v_mov_b32 v{E+45}, 0
    s_waitcnt vmcnt(40)
    """)
    for kb in range(6):
        a(f"v_mfma_f32_32x32x16_bf16 {vr(ACC+16*kb,16)}, {vr(E+4*kb,4)}, {vr(E+24,4)}, 0")
    for i in range(4):
        a(f"v_dot2c_f32_bf16 v{E+44}, v{E+36+i}, v{E+32+i}")
        a(f"v_dot2c_f32_bf16 v{E+45}, v{E+40+i}, v{E+32+i}")
    for dpp in ("row_shr:1", "row_shr:2", "row_shr:4", "row_shr:8", "row_bcast:15 row_mask:0xa", "row_bcast:31 row_mask:0xc"):
        for r in (44, 45):
            a(f"v_add_f32_dpp v{E+r}, v{E+r}, v{E+r} {dpp}")
    for r in (44, 45):
        a(f"v_mul_f32 v{E+r}, {f32(-LOG2E)}, v{E+r}")
        a(f"v_exp_f32 v{E+r}, v{E+r}")
        a(f"v_add_f32 v{E+r}, 1.0, v{E+r}")
        a(f"v_rcp_f32 v{E+r}, v{E+r}")
    a(f"""
    s_lshl_b32 s59, s59, 2
    s_add_u32 s59, s59, {GO}
    v_mov_b32 v{T}, 0
    s_mov_b64 exec, 0x8000000000000000
    """.replace("s_mov_b64 exec, 0x8000000000000000", "s_mov_b32 exec_lo, 0\n s_mov_b32 exec_hi, 0x80000000"))
    a(f"""
    buffer_store_dwordx2 {vr(E+44,2)}, v{T}, s[{SWS}:{SWS+3}], s59 offen
    s_mov_b64 exec, -1
    s_cmp_eq_u32 s17, 0
    s_cbranch_scc0 K1_FFN
    """)

    def reads(s, k, xb):
        out = []
        if k == 0:
            out.append(f"ds_read_b128 {vr(XF+4*xb,4)}, v{VXA+s}")
        sg, ch = k >> 1, k & 1
        for j in range(2):
            out.append(f"ds_read_b64_tr_b16 {vr(WF+4*k+2*j,2)}, v{VWA+ch} offset:{s*10240+4096+sg*2048+j*512}")
        return out

    def mainloop(role):
        stamp(a, 2)
        a("s_waitcnt vmcnt(31)")
        a("s_barrier")
        stamp(a, 3)
        for k in range(6):
            for t in reads(0, k, 0):
                a(t)
        xb = 0
        for c in range(8):
            for s in range(4):
                dm = []
                if s == 3 and c < 7:
                    nst, cst = (c + 1) % 4, c % 4
                    d = (nst - cst) * STG
                    for r in range(VXA, VWA + 2):
                        if d > 0:
                            a(f"v_add_u32 v{r}, {d}, v{r}")
                        else:
                            a(f"v_subrev_u32 v{r}, {-d}, v{r}")
                    n = 20 if c <= 4 else (10 if c == 5 else 0)
                    if c <= 2:
                        n += 1
                    a(f"s_waitcnt vmcnt({n}) lgkmcnt(0)")
                    a("s_barrier")
                p = c if s == 3 else c - 1
                ph = (s + 1) % 4
                if 0 <= p <= 3:
                    dl = dma_list(p + 4)
                    lo, hi = [(0, 3), (3, 5), (5, 8), (8, 10)][ph]
                    dm = dl[lo:hi]
                last = (c == 7 and s == 3)
                ns = (s + 1) % 4
                for k in range(6):
                    a(f"s_waitcnt lgkmcnt({10 if k == 0 else 11})" if not last else f"s_waitcnt lgkmcnt({10-2*k})")
                    W, X = vr(WF + 4 * k, 4), vr(XF + 4 * xb, 4)
                    A, B = (X, W) if (role == 0 and k >= 4) else (W, X)
                    g = None
                    if k % 2 == 1 and dm:
                        g = dm.pop(0)
                        a(g[0])
                    a(f"v_mfma_f32_32x32x16_bf16 {vr(ACC+16*k,16)}, {A}, {B}, {vr(ACC+16*k,16)}")
                    if g:
                        for t in g[1:]:
                            a(t)
                    if not last:
                        for t in reads(ns, k, xb ^ 1):
                            a(t)
                assert not dm
                xb ^= 1

    mainloop(0)
    stamp(a, 4)
    SC = 0.25 * LOG2E
    a(f"""
    v_mov_b32 v{E}, {f32(SC)}
    v_mov_b32 v{E+1}, {f32(SC)}
    v_lshlrev_b32 v{T}, 4, v0
    v_and_b32 v{T+1}, 15, v0
    v_lshlrev_b32 v{T+1}, 4, v{T+1}
    v_lshrrev_b32 v{T+2}, 5, v0
    v_lshl_add_u32 v{T+1}, v{T+2}, 8, v{T+1}
    v_bfe_u32 v{T+2}, v0, 4, 1
    v_lshl_add_u32 v{T+1}, v{T+2}, 16, v{T+1}
    s_lshl_b32 s52, s16, 2
    s_add_u32 s52, s52, s19
    s_lshl_b32 s52, s52, 10
    s_lshl_b32 s53, s18, 18
    s_add_u32 s52, s52, s53
    """)
    tb = 0
    for kb in range(6):
        for hh in range(2):
            src = ACC + 16 * kb + 8 * hh
            dst = E + 4 + 4 * (tb % 4)
            tb += 1
            if kb < 2:
                for i in range(4):
                    a(f"v_pk_mul_f32 {vr(src+2*i,2)}, {vr(src+2*i,2)}, {vr(E,2)}")
            for i in range(4):
                a(f"v_cvt_pk_bf16_f32 v{dst+i}, v{src+2*i}, v{src+2*i+1}")
            if kb < 4:
                base = (QF if kb < 2 else KF) + (2 * (kb & 1) + hh) * 65536
                a(f"s_add_u32 s53, s52, {base}")
                a(f"buffer_store_dwordx4 {vr(dst,4)}, v{T}, s[{SWS}:{SWS+3}], s53 offen")
            else:
                base = VF + (2 * (kb & 1)) * 65536
                a(f"s_add_u32 s53, s52, {base}")
                a(f"buffer_store_dwordx4 {vr(dst,4)}, v{T+1}, s[{SWS}:{SWS+3}], s53 offen offset:{hh*512}")
    a("s_branch K1_FIN")
    a.label("K1_FFN")
    mainloop(1)
    stamp(a, 4)
    CL, C2, C30 = E, E + 2, E + 4
    a(f"""
    v_mov_b32 v{CL}, {f32(LOG2E)}
    v_mov_b32 v{CL+1}, {f32(LOG2E)}
    v_mov_b32 v{C2}, 2.0
    v_mov_b32 v{C2+1}, 2.0
    v_mov_b32 v{C30}, {f32(30.0)}
    v_lshlrev_b32 v{T}, 4, v0
    s_lshl_b32 s52, s16, 2
    s_add_u32 s52, s52, s19
    s_mul_i32 s52, s52, {86*1024}
    s_lshl_b32 s53, s44, 11
    s_add_u32 s52, s52, s53
    s_add_u32 s52, s52, {AF}
    """)
    for kb in range(6):
        if kb == 5:
            a("s_cmp_eq_u32 s45, 5")
            a("s_cbranch_scc1 K1_FIN")
        for t in range(2):
            src = ACC + 16 * kb + 8 * t
            U = E + 8 + 24 * (t & 1)
            N = U + 8
            D = U + 16
            for i in range(4):
                a(f"v_pk_mul_f32 {vr(U+2*i,2)}, {vr(src+2*i,2)}, {vr(CL,2)}")
            for i in range(8):
                a(f"v_min_f32 v{U+i}, v{U+i}, v{C30}")
            for i in range(8):
                a(f"v_exp_f32 v{U+i}, v{U+i}")
            for i in range(4):
                a(f"v_pk_add_f32 {vr(N+2*i,2)}, {vr(U+2*i,2)}, {vr(C2,2)}")
            for i in range(4):
                a(f"v_pk_mul_f32 {vr(N+2*i,2)}, {vr(N+2*i,2)}, {vr(U+2*i,2)}")
            for i in range(4):
                a(f"v_pk_add_f32 {vr(U+2*i,2)}, {vr(N+2*i,2)}, {vr(C2,2)}")
            for i in range(8):
                a(f"v_rcp_f32 v{U+i}, v{U+i}")
            for i in range(4):
                a(f"v_pk_mul_f32 {vr(N+2*i,2)}, {vr(N+2*i,2)}, {vr(src+2*i,2)}")
            for i in range(4):
                a(f"v_pk_mul_f32 {vr(N+2*i,2)}, {vr(N+2*i,2)}, {vr(U+2*i,2)}")
            for i in range(4):
                a(f"v_cvt_pk_bf16_f32 v{D+i}, v{N+2*i}, v{N+2*i+1}")
            off = (2 * kb + t) * 1024
            a(f"s_add_u32 s53, s52, {off}")
            a(f"buffer_store_dwordx4 {vr(D,4)}, v{T}, s[{SWS}:{SWS+3}], s53 offen")
    a.label("K1_FIN")
    stamp(a, 5)
    if STAMPS:
        a("s_waitcnt vmcnt(0)")
    stamp(a, 6)
    stamp_flush(a, 0, 7, 14)
    a.label("K1_END")
    a("s_endpgm")
    return kd("k1_kernel", 256, 256)


def gen_k2(a):
    head(a, "k2_kernel")
    SWS = 8
    T = 1
    Q = 8
    MD, MF = 16, 32
    S = 48
    NM = 96
    CD = 128
    O = 192
    P = 224
    M = 240
    KA = 0
    VA = 40
    a(f"""
    s_cmp_ge_u32 s2, 256
    s_cbranch_scc1 K2_END
    {"s_memrealtime s[64:65]" if STAMPS else ""}
    s_load_dwordx2 s[4:5], s[0:1], 80
    v_lshrrev_b32 v1, 6, v0
    v_and_b32 v0, 63, v0
    v_readfirstlane_b32 s19, v1
    s_and_b32 s52, s2, 7
    s_lshr_b32 s53, s2, 3
    s_lshr_b32 s16, s52, 2
    s_lshl_b32 s16, s16, 4
    s_lshr_b32 s54, s53, 1
    s_add_u32 s16, s16, s54
    s_and_b32 s18, s52, 3
    s_lshl_b32 s18, s18, 1
    s_and_b32 s54, s53, 1
    s_add_u32 s18, s18, s54
    s_lshl_b32 s18, s18, 2
    s_add_u32 s18, s18, s19
    """)
    a(f"""
    s_lshl_b32 s20, s18, 16
    s_lshl_b32 s21, s16, 11
    s_add_u32 s20, s20, s21
    s_add_u32 s22, s20, {KF - 8192}
    s_add_u32 s23, s22, 4096
    s_add_u32 s24, s22, 8192
    s_add_u32 s25, s20, {VF - 8192}
    s_add_u32 s26, s25, 4096
    s_add_u32 s27, s25, 8192
    v_lshlrev_b32 v{T}, 4, v0
    v_and_b32 v{T+1}, 15, v0
    v_lshlrev_b32 v{T+1}, 4, v{T+1}
    v_lshrrev_b32 v{T+2}, 5, v0
    v_lshl_add_u32 v{T+1}, v{T+2}, 8, v{T+1}
    s_mov_b32 s28, 0x3f803f80
    """)
    for i in range(80):
        a(f"v_accvgpr_write_b32 a{VA+i}, s28")
    a("s_waitcnt lgkmcnt(0)")
    stamp(a, 1)
    srd(a, SWS, 4, WS_BYTES)
    a(f"buffer_load_dwordx4 {vr(Q,4)}, v{T}, s[{SWS}:{SWS+3}], s20 offen")
    a(f"buffer_load_dwordx4 {vr(Q+4,4)}, v{T}, s[{SWS}:{SWS+3}], s20 offen offset:1024")
    for i in range(9, -1, -1):
        a(f"buffer_load_dwordx4 {ar(KA+4*i,4)}, v{T}, s[{SWS}:{SWS+3}], s{22+i//4} offen offset:{(i%4)*1024}")
    a("s_mov_b32 exec_lo, 0xffff")
    a("s_mov_b32 exec_hi, 0xffff")
    for i in range(9, -1, -1):
        for t in range(2):
            a(f"buffer_load_dwordx4 {ar(VA+8*i+4*t,4)}, v{T+1}, s[{SWS}:{SWS+3}], s{25+i//4} offen offset:{(i%4)*1024+t*512}")
    a("s_mov_b64 exec, -1")
    a(f"""
    v_and_b32 v{T+3}, 31, v0
    v_lshlrev_b32 v{T+2}, 2, v{T+2}
    v_sub_u32 v{T+3}, v{T+3}, v{T+2}
    v_mov_b32 v{T+4}, {f32(-1e30)}
    """)
    for r in range(16):
        kk = 8 * (r >> 2) + (r & 3)
        a(f"v_cmp_le_i32 vcc, {kk}, v{T+3}")
        a(f"v_cndmask_b32 v{MD+r}, v{T+4}, 0, vcc" if False else f"v_cndmask_b32_e64 v{MD+r}, v{T+4}, 0, vcc")
        a(f"v_cndmask_b32_e64 v{MF+r}, 0, v{T+4}, vcc")
    a(f"v_mov_b32 v{M}, v{T+4}")
    a(f"v_mov_b32 v{M+1}, v{T+4}")
    for i in range(32):
        a(f"v_mov_b32 v{O+i}, 0")
    units = []
    for i in range(9, -1, -1):
        for u in (1, 0):
            rel = i - u
            if rel < 0 or rel > 8:
                continue
            kind = "d" if rel == 8 else ("f" if rel == 0 else "n")
            units.append((u, i, kind))
    nU = len(units)
    exits = {2: 0, 6: 1, 10: 2, 14: 3}
    def smfma(n, cfun):
        u, i, kind = units[n]
        a(f"v_mfma_f32_32x32x16_bf16 {vr(S+16*(n%3),16)}, {ar(KA+4*i,4)}, {vr(Q+4*u,4)}, {cfun(u, kind)}")

    def c1(u, kind):
        return {"n": "0", "d": vr(MD, 16), "f": vr(MF, 16)}[kind]

    def kwait(n):
        u, i, kind = units[n]
        a(f"s_waitcnt vmcnt({20 + i})")

    stamp(a, 2)
    kwait(0)
    stamp(a, 3)
    smfma(0, c1)
    kwait(1)
    smfma(1, c1)
    for n in range(nU):
        if n + 2 < nU:
            kwait(n + 2)
            smfma(n + 2, c1)
        u = units[n][0]
        b = S + 16 * (n % 3)
        for j in range(8):
            a(f"v_max3_f32 v{M+u}, v{b+2*j}, v{b+2*j+1}, v{M+u}")
        if n in exits:
            a(f"s_cmp_le_u32 s16, {exits[n]}")
            a("s_cbranch_scc1 K2_P1DONE")
    a.label("K2_P1DONE")
    for u in range(2):
        a(f"v_mov_b32 v{M+2+u}, v{M+u}")
    for u in range(2):
        a(f"v_permlane32_swap_b32 v{M+u}, v{M+2+u}")
    for u in range(2):
        a(f"v_max_f32 v{M+u}, v{M+u}, v{M+2+u}")
    for u in range(2):
        a(f"v_sub_f32 v{NM+16*u}, 0, v{M+u}")
        a(f"v_sub_f32 v{NM+16*u+1}, 0, v{M+u}")
    for u in range(2):
        for j in range(1, 8):
            a(f"v_pk_mov_b32 {vr(NM+16*u+2*j,2)}, {vr(NM+16*u,2)}, {vr(NM+16*u,2)}")
        for j in range(8):
            a(f"v_pk_add_f32 {vr(CD+32*u+2*j,2)}, {vr(MD+2*j,2)}, {vr(NM+16*u,2)}")
            a(f"v_pk_add_f32 {vr(CD+32*u+16+2*j,2)}, {vr(MF+2*j,2)}, {vr(NM+16*u,2)}")

    def c2(u, kind):
        return {"n": vr(NM + 16 * u, 16), "d": vr(CD + 32 * u, 16), "f": vr(CD + 32 * u + 16, 16)}[kind]

    stamp(a, 4)
    a("s_waitcnt vmcnt(0)")
    smfma(0, c2)
    smfma(1, c2)
    for n in range(nU):
        u, i, kind = units[n]
        b = S + 16 * (n % 3)
        p = P + 8 * (n % 2)
        if n + 2 < nU:
            smfma(n + 2, c2)
        for t in range(2):
            for j in range(8):
                a(f"v_exp_f32 v{b+8*t+j}, v{b+8*t+j}")
            for j in range(4):
                a(f"v_cvt_pk_bf16_f32 v{p+4*t+j}, v{b+8*t+2*j}, v{b+8*t+2*j+1}")
            a(f"v_mfma_f32_32x32x16_bf16 {vr(O+16*u,16)}, {ar(VA+8*i+4*t,4)}, {vr(p+4*t,4)}, {vr(O+16*u,16)}")
        if n in exits:
            a(f"s_cmp_le_u32 s16, {exits[n]}")
            a("s_cbranch_scc1 K2_P2DONE")
    a.label("K2_P2DONE")
    a(f"""
    s_lshl_b32 s20, s16, 16
    s_lshl_b32 s21, s18, 10
    s_add_u32 s20, s20, s21
    s_add_u32 s20, s20, {OF}
    s_add_u32 s21, s20, 32768
    """)
    for u in range(2):
        a(f"v_rcp_f32 v{M+u}, v{O+16*u+8}")
    for u in range(2):
        for j in range(8):
            a(f"v_mul_f32 v{O+16*u+j}, v{O+16*u+j}, v{M+u}")
        for j in range(4):
            a(f"v_cvt_pk_bf16_f32 v{P+4*u+j}, v{O+16*u+2*j}, v{O+16*u+2*j+1}")
        a(f"buffer_store_dwordx4 {vr(P+4*u,4)}, v{T}, s[{SWS}:{SWS+3}], s{20+u} offen")
    stamp(a, 5)
    if STAMPS:
        a("s_waitcnt vmcnt(0)")
    stamp(a, 6)
    stamp_flush(a, 8, 7, 4)
    a.label("K2_END")
    a("s_endpgm")
    return kd("k2_kernel", 256 + 120, 256)


def gen_k3(a):
    head(a, "k3_kernel")
    SW, SWS, SO = 20, 24, 28
    D = 8
    T = 1
    VA0, VA1 = 8, 9
    VD0, VD1 = 10, 11
    VWA = 12
    G = 14
    WF = 16
    AFR = 32
    ACC = 96
    E = 160
    a(f"""
    s_cmp_ge_u32 s2, 256
    s_cbranch_scc1 K3_END
    {"s_memrealtime s[64:65]" if STAMPS else ""}
    s_load_dwordx2 s[4:5], s[0:1], 16
    s_load_dwordx2 s[6:7], s[0:1], 48
    s_load_dwordx2 s[8:9], s[0:1], 64
    s_load_dwordx2 s[10:11], s[0:1], 80
    v_lshrrev_b32 v1, 6, v0
    v_and_b32 v0, 63, v0
    v_readfirstlane_b32 s19, v1
    s_and_b32 s52, s2, 7
    s_lshr_b32 s53, s2, 3
    s_lshl_b32 s16, s52, 2
    s_lshr_b32 s54, s53, 3
    s_add_u32 s16, s16, s54
    s_and_b32 s17, s53, 7
    """)
    a(f"""
    s_sub_u32 s32, s19, 1
    s_lshl_b32 s32, s32, 5
    s_cmp_eq_u32 s19, 0
    s_cselect_b32 s32, 0, s32
    s_cselect_b32 s33, 32, 86
    s_mov_b32 s34, {AF}
    s_cselect_b32 s34, {OF}, s34
    s_cmp_eq_u32 s19, 3
    s_cselect_b32 s35, 22, 32
    s_lshl_b32 s36, s16, 1
    s_mul_i32 s36, s36, s33
    s_add_u32 s36, s36, s32
    s_lshl_b32 s36, s36, 10
    s_add_u32 s36, s36, s34
    s_lshl_b32 s37, s33, 10
    v_lshlrev_b32 v{VA0}, 4, v0
    v_add_u32 v{VA1}, s37, v{VA0}
    s_lshl_b32 s38, s32, 14
    s_lshl_b32 s39, s17, 7
    s_add_u32 s38, s38, s39
    v_lshrrev_b32 v{T}, 3, v0
    v_and_b32 v{T+1}, 7, v0
    v_bfe_u32 v{T+2}, v0, 4, 1
    v_lshlrev_b32 v{T+2}, 2, v{T+2}
    v_xor_b32 v{T+1}, v{T+1}, v{T+2}
    v_lshlrev_b32 v{VD0}, 4, v{T+1}
    v_lshl_add_u32 v{VD0}, v{T}, 10, v{VD0}
    v_add_u32 v{VD1}, 8192, v{VD0}
    s_lshl_b32 s40, s19, 14
    v_lshrrev_b32 v{T}, 5, v0
    v_lshlrev_b32 v{VWA}, 9, v{T}
    v_bfe_u32 v{T}, v0, 2, 2
    v_lshl_add_u32 v{VWA}, v{T}, 7, v{VWA}
    v_bfe_u32 v{T}, v0, 3, 1
    v_lshl_add_u32 v{VWA}, v{T}, 6, v{VWA}
    v_bfe_u32 v{T}, v0, 4, 1
    v_lshl_add_u32 v{VWA}, v{T}, 5, v{VWA}
    v_and_b32 v{T}, 3, v0
    v_lshl_add_u32 v{VWA}, v{T}, 3, v{VWA}
    v_add_u32 v{VWA}, s40, v{VWA}
    v_xor_b32 v{VWA+1}, 64, v{VWA}
    v_and_b32 v{T}, 31, v0
    v_lshlrev_b32 v{T}, 2, v{T}
    s_lshl_b32 s41, s16, 8
    s_add_u32 s41, s41, {GO}
    s_waitcnt lgkmcnt(0)
    s_cmp_eq_u32 s19, 0
    s_cselect_b32 s{SW}, s4, s6
    s_cselect_b32 s{SW+1}, s5, s7
    s_and_b32 s{SW+1}, s{SW+1}, 0xffff
    s_lshl_b32 s{SW+2}, s33, 14
    s_mov_b32 s{SW+3}, 0x20000
    """)
    stamp(a, 1)
    srd(a, SWS, 10, WS_BYTES)
    srd(a, SO, 8, 2048 * 1024)
    a(f"buffer_load_dword v{G}, v{T}, s[{SWS}:{SWS+3}], s41 offen")
    a(f"buffer_load_dword v{G+1}, v{T}, s[{SWS}:{SWS+3}], s41 offen offset:128")
    a("s_mov_b32 s42, 0")

    def issue(slot):
        a(f"""
        s_cmp_lt_u32 s42, s35
        s_cselect_b32 s43, s36, 0x40000000
        s_cselect_b32 s44, s38, 0x40000000
        s_add_u32 m0, s40, {slot*2048}
        buffer_load_dwordx4 {vr(AFR+8*slot,4)}, v{VA0}, s[{SWS}:{SWS+3}], s43 offen
        buffer_load_dwordx4 v{VD0}, s[{SW}:{SW+3}], s44 offen lds
        s_add_u32 m0, s40, {slot*2048+1024}
        buffer_load_dwordx4 {vr(AFR+8*slot+4,4)}, v{VA1}, s[{SWS}:{SWS+3}], s43 offen
        buffer_load_dwordx4 v{VD1}, s[{SW}:{SW+3}], s44 offen lds
        s_add_u32 s42, s42, 1
        s_add_u32 s36, s36, 1024
        s_add_u32 s38, s38, 16384
        """)

    def wreads(slot, b):
        for nb in range(2):
            for j in range(2):
                a(f"ds_read_b64_tr_b16 {vr(WF+8*b+4*nb+2*j,2)}, v{VWA+nb} offset:{slot*2048+j*1024}")

    for s in range(D):
        issue(s)
    for i in range(64):
        a(f"v_mov_b32 v{ACC+i}, 0")
    a("s_mov_b32 s45, 0")
    stamp(a, 2)
    a(f"s_waitcnt vmcnt({4*(D-1)})")
    stamp(a, 3)
    wreads(0, 0)
    a.label("K3_LOOP")
    for s in range(D):
        b = s & 1
        a(f"s_waitcnt vmcnt({4*(D-2)})")
        wreads((s + 1) % D, b ^ 1)
        a("s_waitcnt lgkmcnt(4)")
        for nb in range(2):
            for tb in range(2):
                acc = ACC + 16 * (2 * nb + tb)
                a(f"v_mfma_f32_32x32x16_bf16 {vr(acc,16)}, {vr(WF+8*b+4*nb,4)}, {vr(AFR+8*s+4*tb,4)}, {vr(acc,16)}")
        issue(s)
        if s & 1:
            a("s_add_u32 s45, s45, 2")
            a("s_cmp_ge_u32 s45, s35")
            if s == D - 1:
                a("s_cbranch_scc0 K3_LOOP")
            else:
                a("s_cbranch_scc1 K3_DONE")
    a.label("K3_DONE")
    stamp(a, 4)
    a("s_waitcnt vmcnt(0) lgkmcnt(0)")
    a(f"""
    s_cmp_eq_u32 s19, 0
    s_cbranch_scc1 K3_G
    v_sub_f32 v{G}, 1.0, v{G}
    v_sub_f32 v{G+1}, 1.0, v{G+1}
    """)
    a.label("K3_G")
    for tl in range(4):
        for i in range(16):
            a(f"v_mul_f32 v{ACC+16*tl+i}, v{ACC+16*tl+i}, v{G+(tl&1)}")
    a("s_barrier")
    a(f"""
    s_lshl_b32 s46, s19, 12
    v_add_u32 v{T}, s46, v{VA0}
    s_lshl_b32 s46, s19, 14
    v_add_u32 v{T+1}, s46, v{VA0}
    """)
    for tl in range(4):
        for q in range(4):
            a(f"ds_write_b128 v{T}, {vr(ACC+16*tl+4*q,4)} offset:{tl*16384+q*1024}")
    a("s_waitcnt lgkmcnt(0)")
    a("s_barrier")
    for w in range(4):
        for q in range(4):
            a(f"ds_read_b128 {vr(ACC+16*w+4*q,4)}, v{T+1} offset:{w*4096+q*1024}")
    a(f"""
    s_and_b32 s46, s19, 1
    s_lshl_b32 s46, s46, 15
    s_lshl_b32 s47, s16, 16
    s_add_u32 s46, s46, s47
    s_lshr_b32 s47, s19, 1
    s_lshl_b32 s47, s47, 6
    s_add_u32 s46, s46, s47
    s_add_u32 s46, s46, s39
    v_and_b32 v{T+2}, 31, v0
    v_lshlrev_b32 v{T+2}, 10, v{T+2}
    v_lshrrev_b32 v{T+3}, 5, v0
    v_lshl_add_u32 v{T+2}, v{T+3}, 4, v{T+2}
    s_waitcnt lgkmcnt(0)
    """)
    for i in range(8):
        a(f"v_pk_add_f32 {vr(ACC+2*i,2)}, {vr(ACC+2*i,2)}, {vr(ACC+16+2*i,2)}")
        a(f"v_pk_add_f32 {vr(ACC+32+2*i,2)}, {vr(ACC+32+2*i,2)}, {vr(ACC+48+2*i,2)}")
    for i in range(8):
        a(f"v_pk_add_f32 {vr(ACC+2*i,2)}, {vr(ACC+2*i,2)}, {vr(ACC+32+2*i,2)}")
    for i in range(8):
        a(f"v_cvt_pk_bf16_f32 v{E+i}, v{ACC+2*i}, v{ACC+2*i+1}")
    for p in range(2):
        a(f"v_permlane32_swap_b32 v{E+4*p}, v{E+4*p+2}")
        a(f"v_permlane32_swap_b32 v{E+4*p+1}, v{E+4*p+3}")
        a(f"buffer_store_dwordx4 {vr(E+4*p,4)}, v{T+2}, s[{SO}:{SO+3}], s46 offen offset:{32*p}")
    stamp(a, 5)
    if STAMPS:
        a("s_waitcnt vmcnt(0)")
    stamp(a, 6)
    stamp_flush(a, 16, 7, 10)
    a.label("K3_END")
    a("s_endpgm")
    return kd("k3_kernel", 256, 256)


def main():
    ref = open(f"cdna_kernels/{NAME}.s.ref").read().split("\n")
    hdr = [l for l in ref if l.startswith(";") and "@launch" not in l and "Override launch" not in l and "grid=ceil" not in l]
    a = Asm()
    a.raw("\n".join(hdr))
    a.raw("""; @launch kernel=k1_kernel grid=(256,1,1) block=(256,1,1) lds=163840
; @launch kernel=k2_kernel grid=(256,1,1) block=(256,1,1) lds=0
; @launch kernel=k3_kernel grid=(256,1,1) block=(256,1,1) lds=65536
""" + "; @launch kernel=e_kernel grid=(256,1,1) block=(256,1,1) lds=0\n" * NEMPTY + """.amdgcn_target "amdgcn-amd-amdhsa--gfx950"
.text""")
    kds = [gen_k1(a), gen_k2(a), gen_k3(a)]
    if NEMPTY:
        head(a, "e_kernel")
        a("s_endpgm")
        kds.append(kd("e_kernel", 8, 8))
    txt = a.finalize(True)
    txt += '.section .rodata,"a"\n' + "".join(".p2align 6" + k for k in kds)
    out = sys.argv[1] if len(sys.argv) > 1 else f"cdna_kernels/{NAME}.s"
    open(out, "w").write(txt)


main()
```

```python
import sys, struct, math
sys.path.insert(0, "dev")
from asmlib import Asm

NAME = "gated_mix__sliding_block__dense_activation_mish__prompt"
KF, VF, OF, AF, GO = 2 << 20, 4 << 20, 6 << 20, 8 << 20, 14 << 20
FL = 15 << 20
FKV, FACT, FO = FL, FL + 4096, FL + 8192
FL_BYTES = 12288
WS_BYTES = 16 << 20
LOG2E = 1.4426950408889634
BIG = "0x40000000"
NEG = -1e30

OPT = {}
for x in list(sys.argv[1:]):
    if x.startswith("--"):
        k, _, v = x[2:].partition("=")
        OPT[k] = v or "1"
        sys.argv.remove(x)
STAMPS = "stamps" in OPT


def f32(x):
    return "0x%08x" % struct.unpack("<I", struct.pack("<f", x))[0]


def vr(b, n):
    return f"v[{b}:{b+n-1}]"


def ar(b, n):
    return f"a[{b}:{b+n-1}]"


def sr(b):
    return f"s[{b}:{b+3}]"


class Q:
    def __init__(self, a, name, mx):
        self.a, self.name, self.mx, self.q = a, name, mx, []

    def issue(self, tag):
        self.q.append(tag)

    def need(self, tag):
        idx = [i for i, t in enumerate(self.q) if t == tag]
        if not idx:
            return None
        n = len(self.q) - 1 - idx[-1]
        del self.q[:idx[-1] + 1]
        return min(n, self.mx)

    def wait(self, tag):
        n = self.need(tag)
        if n is not None:
            self.a(f"s_waitcnt {self.name}({n})")

    def drain(self):
        self.q = []
        self.a(f"s_waitcnt {self.name}(0)")


PX, PQKV, PWO, PW1, PB1, PW2, PGW, POUT, PDBG, PWS = 4, 6, 8, 12, 14, 16, 18, 20, 22, 24
SX, SQ, SWS, SW1, SB = 28, 32, 36, 40, 44
SWO, SW2, SG, SO = 32, 40, 44, 28
XCD, IDX, WV = 26, 27, 3
RT, C, FB0, NBLK, TB, QP, HD, RB, CT, BST, S3W, S3O, L3 = 48, 49, 50, 51, 52, 53, 54, 55, 56, 57, 58, 59, 60
S0 = 61
ST0 = 68
lab = [0]


def gen(a):
    vm = Q(a, "vmcnt", 63)
    lg = Q(a, "lgkmcnt", 15)

    def srd(d, base, nbytes):
        a(f"s_mov_b32 s{d}, s{base}")
        a(f"s_and_b32 s{d+1}, s{base+1}, 0xffff")
        a(f"s_mov_b32 s{d+2}, {nbytes}")
        a(f"s_mov_b32 s{d+3}, 0x20000")

    def stamp(i):
        if STAMPS:
            a(f"s_memrealtime s[{ST0+2*i}:{ST0+2*i+1}]")

    def spin_until(vflag, load):
        lab[0] += 1
        L = f"SP{lab[0]}"
        a(f"s_mov_b32 s{S0+6}, 0x40000")
        a.label(L)
        a(f"""
        v_cmp_eq_u32 vcc, 1, v{vflag}
        s_cmp_eq_u64 vcc, -1
        s_cbranch_scc1 {L}_OK
        s_sleep 1
        {load}
        s_waitcnt vmcnt(0)
        s_sub_u32 s{S0+6}, s{S0+6}, 1
        s_cmp_lg_u32 s{S0+6}, 0
        s_cbranch_scc1 {L}
        s_endpgm
        """)
        a.label(L + "_OK")

    def publish(soff, vz, vone):
        a(f"""
        v_mov_b32 v{vz}, 0
        v_mov_b32 v{vone}, 1
        s_mov_b64 exec, 1
        buffer_store_dword v{vone}, v{vz}, {sr(SWS)}, {soff} offen sc1
        s_mov_b64 exec, -1
        """)
        vm.issue("flag")

    a.raw(f".globl {NAME}_kernel\n.p2align 8\n.type {NAME}_kernel,@function")
    a.label(f"{NAME}_kernel")
    VX, VK, VQ, VFF = 1, 5, 7, 8
    VXA, VKA, VQH, VFH, VQL, VFL = 11, 15, 17, 18, 19, 20
    T = 21
    WR = 28
    V3D0, V3D1, L16, VV = 60, 61, 62, 63
    AKV = 64
    AQ = 96
    AFF = 112
    E = 160
    Z, MD, MF = 208, 224, 240
    XA, KA, VA = 0, 128, 168
    VGO, VFLG, DUM = 204, 205, 206
    a(f"""
    s_cmp_ge_u32 s2, 256
    s_cbranch_scc1 END
    """)
    stamp(0)
    t0, t1, t2, t3, t4 = S0, S0 + 1, S0 + 2, S0 + 3, S0 + 4
    a(f"""
    s_load_dwordx16 s[4:19], s[0:1], 0
    s_load_dwordx4 s[20:23], s[0:1], 64
    s_load_dwordx2 s[24:25], s[0:1], 80
    v_lshrrev_b32 v1, 6, v0
    v_and_b32 v0, 63, v0
    v_readfirstlane_b32 s{WV}, v1
    s_and_b32 s{XCD}, s2, 7
    s_lshr_b32 s{IDX}, s2, 3
    s_lshr_b32 s{RT}, s{XCD}, 2
    s_lshl_b32 s{RT}, s{RT}, 3
    s_lshr_b32 s{t0}, s{IDX}, 2
    s_add_u32 s{RT}, s{RT}, s{t0}
    s_and_b32 s{C}, s{XCD}, 3
    s_lshl_b32 s{C}, s{C}, 2
    s_and_b32 s{t0}, s{IDX}, 3
    s_add_u32 s{C}, s{C}, s{t0}
    s_lshl_b32 s{FB0}, s{C}, 1
    s_min_u32 s{t0}, s{C}, 11
    s_add_u32 s{FB0}, s{FB0}, s{t0}
    s_cmp_lt_u32 s{C}, 11
    s_cselect_b32 s{NBLK}, 3, 2
    s_lshl_b32 s{TB}, s{RT}, 2
    s_add_u32 s{TB}, s{TB}, s{WV}
    s_lshl_b32 s{QP}, s{RT}, 1
    s_lshr_b32 s{t0}, s{WV}, 1
    s_add_u32 s{QP}, s{QP}, s{t0}
    s_lshl_b32 s{HD}, s{C}, 1
    s_and_b32 s{t0}, s{WV}, 1
    s_add_u32 s{HD}, s{HD}, s{t0}
    v_lshlrev_b32 v{L16}, 4, v0
    """)
    a(f"""
    s_and_b32 s{t0}, s{IDX}, 3
    s_lshl_b32 s{t0}, s{t0}, 15
    s_lshl_b32 s{t1}, s{RT}, 17
    s_add_u32 s{t0}, s{t0}, s{t1}
    s_add_u32 s{t1}, s{WV}, 3
    s_and_b32 s{t1}, s{t1}, 3
    s_lshl_b32 s{t1}, s{t1}, 8
    s_add_u32 s{t0}, s{t0}, s{t1}
    v_and_b32 v{T}, 31, v0
    v_lshlrev_b32 v{T}, 10, v{T}
    v_lshrrev_b32 v{T+1}, 5, v0
    v_lshl_add_u32 v{T}, v{T+1}, 7, v{T}
    s_lshr_b32 s{t1}, s{IDX}, 2
    s_lshl_b32 s{t1}, s{t1}, 6
    v_add_u32 v{T+1}, s{t1}, v0
    s_movk_i32 s{t2}, 3072
    s_cmp_lt_u32 s{WV}, 2
    s_cselect_b32 s{t2}, s{t2}, 2752
    v_mul_lo_u32 v{T+1}, v{T+1}, s{t2}
    s_lshl_b32 s{t1}, s{C}, 7
    s_add_u32 s{t1}, s{t1}, 1024
    s_lshl_b32 s{t2}, s{C}, 6
    s_cmp_eq_u32 s{WV}, 0
    s_cselect_b32 s{t1}, s{t1}, s{t2}
    s_lshl_b32 s{t2}, s{FB0}, 6
    s_lshl_b32 s{t3}, s{NBLK}, 6
    s_add_u32 s{t3}, s{t3}, s{t2}
    s_sub_u32 s{t3}, s{t3}, 4
    s_cmp_eq_u32 s{WV}, 2
    s_cselect_b32 s{t2}, s{t2}, s{t3}
    s_waitcnt lgkmcnt(0)
    """)
    stamp(1)
    srd(SX, PX, 2048 * 1024)
    srd(SQ, PQKV, 512 * 3072)
    srd(SW1, PW1, 512 * 2752)
    a(f"""
    s_cmp_eq_u32 s{WV}, 0
    s_cbranch_scc0 PF_N0
    buffer_load_dword v{DUM}, v{T+1}, {sr(SQ)}, s{t1} offen
    buffer_load_dword v{DUM+1}, v{T}, {sr(SX)}, s{t0} offen
    s_branch PF_DONE
    """)
    a.label("PF_N0")
    a(f"""
    buffer_load_dword v{DUM+1}, v{T}, {sr(SX)}, s{t0} offen
    s_cmp_eq_u32 s{WV}, 1
    s_cbranch_scc0 PF_N1
    buffer_load_dword v{DUM}, v{T+1}, {sr(SQ)}, s{t1} offen
    s_branch PF_DONE
    """)
    a.label("PF_N1")
    a(f"buffer_load_dword v{DUM}, v{T+1}, {sr(SW1)}, s{t2} offen")
    a.label("PF_DONE")
    vm.issue("pf")
    vm.issue("pf")
    srd(SWS, PWS, WS_BYTES)
    srd(SB, PB1, 2752)
    a(f"""
    s_or_b32 s{S0+5}, s2, s{WV}
    s_cmp_eq_u32 s{S0+5}, 0
    s_cbranch_scc0 NOCLR
    v_mov_b32 v{E}, 0
    v_mov_b32 v{E+1}, 0
    v_mov_b32 v{E+2}, 0
    v_mov_b32 v{E+3}, 0
    s_mov_b32 s{t0}, {FL}
    s_mov_b32 s{t1}, {FL+4096}
    s_mov_b32 s{t2}, {FL+8192}
    """)
    for i in range(12):
        a(f"buffer_store_dwordx4 {vr(E,4)}, v{L16}, {sr(SWS)}, s{t0+i//4} offen offset:{(i%4)*1024} sc1")
    a.label("NOCLR")
    a(f"""
    s_lshl_b32 s{t0}, s{TB}, 15
    v_lshrrev_b32 v{T}, 3, v0
    v_and_b32 v{T+1}, 7, v0
    v_lshrrev_b32 v{T+2}, 4, v0
    v_xor_b32 v{VX}, v{T+1}, v{T+2}
    v_lshlrev_b32 v{VX}, 4, v{VX}
    v_lshl_add_u32 v{VX}, v{T}, 10, v{VX}
    v_add_u32 v{VX}, s{t0}, v{VX}
    v_add_u32 v{VX+1}, 8192, v{VX}
    v_xor_b32 v{VX+1}, 64, v{VX+1}
    v_add_u32 v{VX+2}, 16384, v{VX}
    v_add_u32 v{VX+3}, 16384, v{VX+1}
    v_and_b32 v{T+2}, 1, v{T+2}
    v_lshlrev_b32 v{T+2}, 2, v{T+2}
    v_xor_b32 v{T+1}, v{T+1}, v{T+2}
    v_lshlrev_b32 v{V3D0}, 4, v{T+1}
    v_lshl_add_u32 v{V3D0}, v{T}, 10, v{V3D0}
    v_add_u32 v{V3D1}, 8192, v{V3D0}
    s_lshl_b32 s{t0}, s{WV}, 4
    v_add_u32 v{T}, s{t0}, v{T}
    v_mul_u32_u24 v{T}, 3072, v{T}
    v_lshl_add_u32 v{T}, v{T+1}, 4, v{T}
    s_lshl_b32 s{t1}, s{C}, 7
    s_add_u32 s{t1}, s{t1}, 1024
    v_add_u32 v{VK}, s{t1}, v{T}
    v_add_u32 v{VK+1}, {8*3072}, v{VK}
    s_lshl_b32 s{L3}, s{WV}, 12
    s_lshl_b32 s{S3W}, s{WV}, 11
    s_add_u32 s{S3W}, s{S3W}, 65536
    """)

    def dmaA(c):
        st = c % 4
        out = []
        for i in range(4):
            g = [f"s_add_u32 m0, s{L3}, {st*16384 + i*1024}"]
            if i == 0:
                g.insert(0, f"s_movk_i32 s{t3}, {c*128}")
            g.append(f"buffer_load_dwordx4 v{VX+i}, {sr(SX)}, s{t3} offen lds")
            out.append((g, ("A", c)))
        for i in range(2):
            g = [f"s_add_u32 m0, s{S3W}, {st*8192 + i*1024}"]
            if i == 0:
                g.insert(0, f"s_mov_b32 s{t4}, {c*64*3072}")
            g.append(f"buffer_load_dwordx4 v{VK+i}, {sr(SQ)}, s{t4} offen lds")
            out.append((g, ("A", c)))
        return out

    def bstage(c):
        return 98304 + c * 16384 if c < 4 else (c - 4) * 16384

    def dmaB(c):
        base = bstage(c)
        out = [([f"s_mov_b32 s{t4}, {c*64*3072}", f"s_add_u32 m0, s{S3O}, {base}",
                 f"buffer_load_dwordx4 v{VQ}, {sr(SQ)}, s{t4} offen lds"], ("B", c))]
        for i in range(3):
            g = [f"s_add_u32 m0, s{BST}, {base + 4096 + i*1024}"]
            if i == 0:
                g.insert(0, f"s_mov_b32 s{t3}, {c*64*2752}")
            g.append(f"buffer_load_dwordx4 v{VFF+i}, {sr(SW1)}, s{t3} offen lds")
            out.append((g, ("B", c)))
        return out

    def emit(grp):
        g, tag = grp
        for t in g:
            a(t)
        vm.issue(tag)

    for g in dmaA(0):
        emit(g)
    a(f"""
    v_lshrrev_b32 v{T}, 2, v0
    v_add_u32 v{T}, s{t0}, v{T}
    v_mul_u32_u24 v{T}, 3072, v{T}
    v_and_b32 v{T+1}, 3, v0
    v_lshl_add_u32 v{T}, v{T+1}, 4, v{T}
    s_lshl_b32 s{t1}, s{C}, 6
    v_add_u32 v{VQ}, s{t1}, v{T}
    s_mul_i32 s{t0}, s{WV}, 192
    s_lshl_b32 s{t1}, s{FB0}, 6
    s_lshl_b32 s{t2}, s{NBLK}, 2
    v_mov_b32 v{T+3}, {BIG}
    """)
    for i in range(3):
        a(f"""
        v_add_u32 v{T}, s{t0}, v0
        v_add_u32 v{T}, {64*i}, v{T}
        v_mul_u32_u24 v{T+1}, 43691, v{T}
        v_lshrrev_b32 v{T+1}, 19, v{T+1}
        v_mul_u32_u24 v{T+2}, 12, v{T+1}
        v_sub_u32 v{T+2}, v{T}, v{T+2}
        v_mul_u32_u24 v{T+1}, 2752, v{T+1}
        v_lshl_add_u32 v{T+1}, v{T+2}, 4, v{T+1}
        v_add_u32 v{T+1}, s{t1}, v{T+1}
        v_cmp_gt_u32 vcc, s{t2}, v{T+2}
        v_cndmask_b32 v{VFF+i}, v{T+3}, v{T+1}, vcc
        """)
    a(f"""
    s_lshl_b32 s{S3O}, s{WV}, 10
    s_mul_i32 s{BST}, s{WV}, 3072
    v_lshlrev_b32 v{T}, 1, v0
    buffer_load_ushort v{E+8}, v{T}, {sr(SB)}, s{t1} offen
    buffer_load_ushort v{E+12}, v{T}, {sr(SB)}, s{t1} offen offset:128
    """)
    vm.issue("bias")
    vm.issue("bias")
    for g in dmaA(1):
        emit(g)
    a(f"""
    v_and_b32 v{T}, 31, v0
    v_lshrrev_b32 v{T+1}, 5, v0
    v_bfe_u32 v{T+2}, v0, 1, 3
    v_xor_b32 v{T+2}, v{T+2}, v{T+1}
    v_lshlrev_b32 v{T+2}, 4, v{T+2}
    v_lshl_add_u32 v{VXA}, v{T}, 7, v{T+2}
    v_add_u32 v{VXA}, s{L3}, v{VXA}
    v_xor_b32 v{VXA+1}, 32, v{VXA}
    v_xor_b32 v{VXA+2}, 64, v{VXA}
    v_xor_b32 v{VXA+3}, 96, v{VXA}
    v_bfe_u32 v{T}, v0, 4, 1
    v_lshlrev_b32 v{T}, 5, v{T}
    v_and_b32 v{T+2}, 3, v0
    v_lshl_add_u32 v{T}, v{T+2}, 3, v{T}
    v_bfe_u32 v{T+2}, v0, 2, 2
    v_lshl_add_u32 v{T+2}, v{T+1}, 3, v{T+2}
    v_lshl_add_u32 v{VKA}, v{T+2}, 7, v{T}
    v_bfe_u32 v{T+3}, v0, 3, 1
    v_lshl_add_u32 v{VKA}, v{T+3}, 6, v{VKA}
    v_add_u32 v{VKA}, 65536, v{VKA}
    v_xor_b32 v{VKA+1}, 64, v{VKA}
    v_lshl_add_u32 v{VQL}, v{T+2}, 6, v{T}
    v_add_u32 v{VQH}, 98304, v{VQL}
    v_mul_u32_u24 v{VFL}, 192, v{T+2}
    v_add_u32 v{VFL}, v{VFL}, v{T}
    v_add_u32 v{VFH}, 98304, v{VFL}
    v_and_b32 v{VV}, 15, v0
    v_lshlrev_b32 v{VV}, 4, v{VV}
    v_lshl_add_u32 v{VV}, v{T+1}, 8, v{VV}
    s_mov_b32 s{t0}, 0x3f803f80
    """)
    for i in range(80):
        a(f"v_accvgpr_write_b32 a{VA+i}, s{t0}")
    a(f"""
    v_and_b32 v{T+3}, 31, v0
    v_lshlrev_b32 v{T+2}, 2, v{T+1}
    v_sub_u32 v{T+3}, v{T+3}, v{T+2}
    v_mov_b32 v{T+4}, {f32(NEG)}
    s_cmp_lt_u32 s{QP}, 4
    s_cselect_b32 s{t0}, {f32(NEG)}, 0
    v_mov_b32 v{T+5}, s{t0}
    """)
    for r in range(16):
        kk = 8 * (r >> 2) + (r & 3)
        a(f"v_cmp_le_i32 vcc, {kk}, v{T+3}")
        a(f"v_mov_b32 v{Z+r}, 0")
        a(f"v_cndmask_b32_e64 v{MD+r}, v{T+4}, 0, vcc")
        a(f"v_cndmask_b32_e64 v{MF+r}, v{T+5}, v{T+4}, vcc")
    for r in (9, 10, 11, 13, 14, 15, 17, 18, 19, 21, 22, 23):
        a(f"v_mov_b32 v{E+r}, 0")
    a(f"""
    v_mov_b32 v{T}, 0x3f80
    v_cmp_gt_u32 vcc, 32, v0
    v_cndmask_b32 v{E+16}, 0, v{T}, vcc
    v_cndmask_b32_e64 v{E+20}, v{T}, 0, vcc
    """)
    stamp(2)

    slots = [("A", c, s, b) for c in range(8) for s in range(4) for b in range(2)] + \
            [("B", c, s, b) for c in range(8) for s in range(4) for b in (1, 2, 3, 0)]
    NS = len(slots)
    LA = 5
    RING = 8

    def slot_reads(n):
        p, c, s, b = slots[n]
        w = WR + 4 * (n % RING)
        if p == "A":
            if b == 0:
                a(f"ds_read_b128 {ar(XA+4*(4*c+s),4)}, v{VXA+s} offset:{(c%4)*16384}")
                lg.issue(("W", n))
            for j in range(2):
                a(f"ds_read_b64_tr_b16 {vr(w+2*j,2)}, v{VKA+b} offset:{(c%4)*8192+s*2048+j*512}")
                lg.issue(("W", n))
        else:
            st = (c % 4) * 16384
            for j in range(2):
                if b == 0:
                    a(f"ds_read_b64_tr_b16 {vr(w+2*j,2)}, v{VQH if c < 4 else VQL} offset:{st+s*1024+j*256}")
                else:
                    a(f"ds_read_b64_tr_b16 {vr(w+2*j,2)}, v{VFH if c < 4 else VFL} offset:{st+4096+s*3072+j*768+(b-1)*64}")
                lg.issue(("W", n))

    def chunk_of(n):
        return slots[n][0], slots[n][1]

    def gemm1(isV, lo, hi, bg):
        for n in range(lo, hi):
            p, c, s, b = slots[n]
            lg.wait(("W", n))
            W, X = vr(WR + 4 * (n % RING), 4), ar(XA + 4 * (4 * c + s), 4)
            if p == "A":
                acc = AKV + 16 * b
                A_, B_ = (X, W) if isV else (W, X)
                first = (c == 0 and s == 0)
            else:
                acc = AQ if b == 0 else AFF + 16 * (b - 1)
                A_, B_ = W, X
                first = (c == 0 and s == 0 and b == 0)
            a(f"v_mfma_f32_32x32x16_bf16 {vr(acc,16)}, {A_}, {B_}, {'0' if first else vr(acc,16)}")
            m = n + LA
            if m < NS:
                if chunk_of(m) != chunk_of(m - 1):
                    vm.wait(chunk_of(m))
                    a("s_barrier")
                slot_reads(m)
            for f in bg.get(n, []):
                f()

    def first_slot(p, c):
        return slots.index((p, c, 0, 0 if p == "A" else 1))

    def sched(bg, start, step, items):
        for i, it in enumerate(items):
            bg.setdefault(int(start + i * step), []).append(it)

    def mk(g):
        return lambda: emit(g)

    vm.wait(("A", 0))
    stamp(3)
    a(f"""
    s_cmp_eq_u32 s{S0+5}, 0
    s_cbranch_scc0 NOGO
    v_mov_b32 v{E+1}, 1
    v_mov_b32 v{E}, 0
    s_mov_b64 exec, 1
    global_store_dword v{E}, v{E+1}, s[{PDBG}:{PDBG+1}] sc1
    s_mov_b64 exec, -1
    """)
    a.label("NOGO")
    a("s_barrier")
    for n in range(LA):
        slot_reads(n)
    for g in dmaA(2):
        emit(g)
    bgA = {}
    seq = [("A", c) for c in range(8)] + [("B", c) for c in range(8)]
    for gi in range(1, 8):
        p2, c2 = seq[gi + 2]
        items = dmaA(c2) if p2 == "A" else dmaB(c2)
        sched(bgA, first_slot(*seq[gi]) - LA, 8 / len(items) if len(items) == 4 else 1, [mk(g) for g in items])
    save = (list(vm.q), list(lg.q))
    a(f"""
    s_cmp_ge_u32 s{C}, 8
    s_cbranch_scc1 PA_V
    """)
    nA = 64
    gemm1(False, 0, nA, bgA)
    a("s_branch PA_DONE")
    a.label("PA_V")
    vm.q, lg.q = list(save[0]), list(save[1])
    gemm1(True, 0, nA, bgA)
    a.label("PA_DONE")
    stamp(4)
    a(f"v_mfma_f32_32x32x16_bf16 {vr(AFF,16)}, {vr(E+8,4)}, {vr(E+16,4)}, 0")
    a(f"v_mfma_f32_32x32x16_bf16 {vr(AFF+16,16)}, {vr(E+8,4)}, {vr(E+20,4)}, 0")
    a(f"v_mfma_f32_32x32x16_bf16 {vr(AFF+32,16)}, {vr(E+12,4)}, {vr(E+16,4)}, 0")

    def kv_setup():
        a(f"""
        v_bfe_u32 v{T}, v0, 4, 1
        v_lshl_add_u32 v{T}, v{T}, 16, v{VV}
        s_movk_i32 s{t1}, 512
        s_cmp_ge_u32 s{C}, 8
        s_cselect_b64 vcc, -1, 0
        s_cselect_b32 s{t1}, s{t1}, 65536
        v_cndmask_b32 v{T}, v{L16}, v{T}, vcc
        s_lshl_b32 s{t0}, s{C}, 18
        s_lshl_b32 s{t2}, s{TB}, 10
        s_add_u32 s{t0}, s{t0}, s{t2}
        s_add_u32 s{t0}, s{t0}, {KF}
        v_mov_b32 v{T+1}, 0
        global_load_dword v{VGO}, v{T+1}, s[{PDBG}:{PDBG+1}] sc1
        """)
        vm.issue("go")

    def kv_store(b, hh):
        def f():
            src = AKV + 16 * b + 8 * hh
            dst = E + 24 + 4 * (2 * b + hh)
            for i in range(4):
                a(f"v_cvt_pk_bf16_f32 v{dst+i}, v{src+2*i}, v{src+2*i+1}")
            if hh == 0:
                a(f"s_add_u32 s{t2}, s{t0}, {b*131072}")
            else:
                a(f"s_add_u32 s{t2}, s{t2}, s{t1}")
            a(f"buffer_store_dwordx4 {vr(dst,4)}, v{T}, {sr(SWS)}, s{t2} offen sc1")
            vm.issue("kvst")
        return f

    def kv_publish():
        vm.wait("kvst")
        a(f"""
        s_lshl_b32 s{t0}, s{C}, 6
        s_add_u32 s{t0}, s{t0}, s{TB}
        s_lshl_b32 s{t0}, s{t0}, 2
        s_add_u32 s{t0}, s{t0}, {FKV}
        v_mov_b32 v{T+1}, 0
        """)
        spin_until(VGO, f"global_load_dword v{VGO}, v{T+1}, s[{PDBG}:{PDBG+1}] sc1")
        publish(f"s{t0}", T + 1, T + 2)

    KVFLAG_LOAD = f"buffer_load_dword v{VFLG}, v{T+3}, {sr(SWS)}, s{t0} offen sc1"

    def kvflag_issue():
        a(f"""
        v_and_b32 v{T+3}, 31, v0
        v_min_u32 v{T+3}, 9, v{T+3}
        s_lshl_b32 s{t0}, s{QP}, 1
        s_add_u32 s{t0}, s{t0}, 1
        v_sub_u32 v{T+3}, s{t0}, v{T+3}
        v_max_i32 v{T+3}, 0, v{T+3}
        v_lshlrev_b32 v{T+3}, 2, v{T+3}
        v_lshrrev_b32 v{T+4}, 5, v0
        v_lshl_add_u32 v{T+3}, v{T+4}, 11, v{T+3}
        s_lshr_b32 s{t0}, s{HD}, 2
        s_lshl_b32 s{t0}, s{t0}, 8
        s_add_u32 s{t0}, s{t0}, {FKV}
        {KVFLAG_LOAD}
        """)
        vm.issue("kvflag")

    bgB = {}
    b0 = nA
    for gi in range(8, 14):
        p2, c2 = seq[gi + 2]
        sched(bgB, max(first_slot(*seq[gi]) - LA, b0) if gi == 8 else first_slot(*seq[gi]) - LA - 2 * (gi - 8), 3.5, [mk(g) for g in dmaB(c2)])
    sched(bgB, b0 + 1, 1, [kv_setup])
    sched(bgB, b0 + 14, 2, [kv_store(0, 0), kv_store(0, 1), kv_store(1, 0), kv_store(1, 1)])
    sched(bgB, b0 + 56, 1, [kv_publish])
    sched(bgB, b0 + 100, 1, [kvflag_issue])
    for k_, v_ in bgA.items():
        if k_ >= nA:
            bgB.setdefault(k_, [])
            bgB[k_] = v_ + bgB[k_]

    KS0 = t1

    def kv_check():
        vm.wait("kvflag")
        spin_until(VFLG, KVFLAG_LOAD)
        a(f"""
        s_lshl_b32 s{t1}, s{HD}, 16
        s_lshl_b32 s{t2}, s{QP}, 11
        s_add_u32 s{t1}, s{t1}, s{t2}
        s_add_u32 s{t2}, s{t1}, {VF - 8192}
        s_add_u32 s{t1}, s{t1}, {KF - 8192}
        """)

    def kvsoff(base, i):
        a(f"s_add_u32 s{t3}, s{base}, {i*1024}")
        if i < 8:
            a(f"s_cmp_ge_u32 s{QP}, {(8 - i + 1)//2}")
            a(f"s_cselect_b32 s{t3}, s{t3}, {BIG}")

    def kpair(i):
        def f():
            kvsoff(t1, i)
            for d in (1, 0):
                a(f"buffer_load_dwordx4 {ar(KA+4*(i+d),4)}, v{L16}, {sr(SWS)}, s{t3} offen offset:{d*1024} sc1")
                vm.issue(("K", i + d))
        return f

    def vpair(i):
        def f():
            kvsoff(t2, i)
            a("s_mov_b32 exec_lo, 0xffff")
            a("s_mov_b32 exec_hi, 0xffff")
            for d in (1, 0):
                for t in range(2):
                    a(f"buffer_load_dwordx4 {ar(VA+8*(i+d)+4*t,4)}, v{VV}, {sr(SWS)}, s{t3} offen offset:{d*1024+t*512} sc1")
                    vm.issue(("V", i + d))
            a("s_mov_b64 exec, -1")
        return f

    sched(bgB, b0 + 114, 1, [kv_check])
    sched(bgB, b0 + 115, 3, [kpair(8), vpair(8)])
    gemm1(False, nA, NS, bgB)
    stamp(5)

    NSL = 20
    QFR = 18
    SC = 0.25 * LOG2E
    a(f"""
    v_mov_b32 v{E}, {f32(SC)}
    v_mov_b32 v{E+1}, {f32(SC)}
    s_lshl_b32 s{RB}, s{XCD}, 2
    s_lshr_b32 s{t0}, s{IDX}, 3
    s_add_u32 s{RB}, s{RB}, s{t0}
    s_and_b32 s{CT}, s{IDX}, 7
    s_mul_i32 s{t0}, s{WV}, 22
    s_cmp_eq_u32 s{WV}, 3
    s_cselect_b32 s{BST}, 65, s{t0}
    s_lshl_b32 s{S3W}, s{BST}, 14
    s_lshl_b32 s{t0}, s{CT}, 7
    s_add_u32 s{S3W}, s{S3W}, s{t0}
    s_lshl_b32 s{S3O}, s{WV}, 17
    s_add_u32 s{S3O}, s{S3O}, s{t0}
    s_mul_i32 s{L3}, s{WV}, {NSL*2048}
    s_lshl_b32 s{t0}, s{WV}, 11
    s_add_u32 s{t0}, s{t0}, 65536
    v_add_u32 v{T}, s{t0}, v{L16}
    s_lshr_b32 s{t0}, s{WV}, 1
    s_lshl_b32 s{t0}, s{t0}, 12
    s_and_b32 s{t4}, s{WV}, 1
    s_lshl_b32 s{t4}, s{t4}, 10
    s_add_u32 s{t0}, s{t0}, s{t4}
    s_add_u32 s{t0}, s{t0}, 65536
    v_add_u32 v{T+1}, s{t0}, v{L16}
    """)
    srd(SWO, PWO, 512 * 1024)
    srd(SW2, PW2, 1376 * 1024)
    srd(SG, PGW, 1024)
    for i in range(8):
        a(f"v_pk_mul_f32 {vr(AQ+2*i,2)}, {vr(AQ+2*i,2)}, {vr(E,2)}")
    for i in range(8):
        a(f"v_cvt_pk_bf16_f32 v{E+8+i}, v{AQ+2*i}, v{AQ+2*i+1}")
    a(f"ds_write_b128 v{T}, {vr(E+8,4)}")
    a(f"ds_write_b128 v{T}, {vr(E+12,4)} offset:1024")
    a("s_waitcnt lgkmcnt(0)")
    lg.q = []
    a("s_barrier")
    a(f"ds_read_b128 {vr(QFR,4)}, v{T+1}")
    a(f"ds_read_b128 {vr(QFR+4,4)}, v{T+1} offset:2048")

    def w3_dma(step):
        def f():
            slot = step % NSL
            if step < 22:
                sd = SW2
                a(f"s_add_u32 s{t4}, s{S3W}, {step*16384}")
                if step == 21:
                    a(f"s_cmp_ge_u32 s{WV}, 2")
                    a(f"s_cselect_b32 s{t4}, {BIG}, s{t4}")
            else:
                sd = SWO
                a(f"s_add_u32 s{t4}, s{S3O}, {(step-22)*16384}")
            a(f"s_add_u32 m0, s{L3}, {slot*2048}")
            a(f"buffer_load_dwordx4 v{V3D0}, {sr(sd)}, s{t4} offen lds")
            a(f"s_add_u32 m0, s{L3}, {slot*2048+1024}")
            a(f"buffer_load_dwordx4 v{V3D1}, {sr(sd)}, s{t4} offen lds")
            vm.issue(("W3", step))
            vm.issue(("W3", step))
        return f

    def pf3():
        a(f"""
        s_lshl_b32 s{t0}, s{IDX}, 2
        s_add_u32 s{t0}, s{t0}, s{WV}
        s_mul_i32 s{t4}, s{t0}, {86*128}
        s_lshl_b32 s{t0}, s{t0}, 12
        v_lshlrev_b32 v12, 7, v0
        v_min_u32 v13, {21*128}, v12
        v_min_u32 v14, {31*128}, v12
        buffer_load_dword a248, v12, {sr(SW2)}, s{t4} offen
        s_add_u32 s{t4}, s{t4}, 8192
        buffer_load_dword a249, v13, {sr(SW2)}, s{t4} offen
        buffer_load_dword a250, v14, {sr(SWO)}, s{t0} offen
        """)
        for _ in range(3):
            vm.issue("pf3")

    GB = 28

    def gate_loads():
        a(f"""
        s_lshl_b32 s{t0}, s{QP}, 6
        s_lshl_b32 s{t4}, s{HD}, 1
        s_add_u32 s{t0}, s{t0}, s{t4}
        s_lshl_b32 s{t0}, s{t0}, 10
        buffer_load_dwordx4 {vr(GB,4)}, v{L16}, {sr(SG)}, 0 offen
        buffer_load_dwordx4 {vr(GB+4,4)}, v{L16}, {sr(SX)}, s{t0} offen
        buffer_load_dwordx4 {vr(GB+8,4)}, v{L16}, {sr(SX)}, s{t0} offen offset:1024
        """)
        for _ in range(3):
            vm.issue("gate")

    CL, C2, C30 = E, E + 2, E + 4
    a(f"""
    v_mov_b32 v{CL}, {f32(LOG2E)}
    v_mov_b32 v{CL+1}, {f32(LOG2E)}
    v_mov_b32 v{C2}, 2.0
    v_mov_b32 v{C2+1}, 2.0
    v_mov_b32 v{C30}, {f32(30.0)}
    s_mul_i32 s{S0+5}, s{TB}, {86*1024}
    s_lshl_b32 s{t0}, s{FB0}, 11
    s_add_u32 s{S0+5}, s{S0+5}, s{t0}
    s_add_u32 s{S0+5}, s{S0+5}, {AF}
    """)
    mbg = [gate_loads, kpair(6), kpair(4), kpair(2), kpair(0), vpair(6), vpair(4), vpair(2), vpair(0)]
    for kb in range(3):
        for t in range(2):
            src = AFF + 16 * kb + 8 * t
            U = E + 8 + 16 * (t & 1)
            N = U + 8
            D = E + 40
            for i in range(4):
                a(f"v_pk_mul_f32 {vr(U+2*i,2)}, {vr(src+2*i,2)}, {vr(CL,2)}")
            for i in range(8):
                a(f"v_min_f32 v{U+i}, v{U+i}, v{C30}")
            for i in range(8):
                a(f"v_exp_f32 v{U+i}, v{U+i}")
            if mbg:
                mbg.pop(0)()
            for i in range(4):
                a(f"v_pk_add_f32 {vr(N+2*i,2)}, {vr(U+2*i,2)}, {vr(C2,2)}")
            for i in range(4):
                a(f"v_pk_mul_f32 {vr(N+2*i,2)}, {vr(N+2*i,2)}, {vr(U+2*i,2)}")
            for i in range(4):
                a(f"v_pk_add_f32 {vr(U+2*i,2)}, {vr(N+2*i,2)}, {vr(C2,2)}")
            for i in range(8):
                a(f"v_rcp_f32 v{U+i}, v{U+i}")
            if mbg:
                mbg.pop(0)()
            for i in range(4):
                a(f"v_pk_mul_f32 {vr(N+2*i,2)}, {vr(N+2*i,2)}, {vr(src+2*i,2)}")
            for i in range(4):
                a(f"v_pk_mul_f32 {vr(N+2*i,2)}, {vr(N+2*i,2)}, {vr(U+2*i,2)}")
            for i in range(4):
                a(f"v_cvt_pk_bf16_f32 v{D+i}, v{N+2*i}, v{N+2*i+1}")
            a(f"s_add_u32 s{t0}, s{S0+5}, {(2*kb+t)*1024}")
            if kb == 2:
                a(f"s_cmp_eq_u32 s{NBLK}, 3")
                a(f"s_cselect_b32 s{t0}, s{t0}, {BIG}")
            a(f"buffer_store_dwordx4 {vr(D,4)}, v{L16}, {sr(SWS)}, s{t0} offen sc1")
            vm.issue("actst")
    assert not mbg
    pf3()
    stamp(6)
    G0, G1 = GB + 12, GB + 13
    a(f"v_mov_b32 v{G0}, 0")
    a(f"v_mov_b32 v{G1}, 0")
    vm.wait("gate")
    for i in range(4):
        a(f"v_dot2c_f32_bf16 v{G0}, v{GB+4+i}, v{GB+i}")
        a(f"v_dot2c_f32_bf16 v{G1}, v{GB+8+i}, v{GB+i}")
    for dpp in ("row_shr:1", "row_shr:2", "row_shr:4", "row_shr:8", "row_bcast:15 row_mask:0xa", "row_bcast:31 row_mask:0xc"):
        for r in (G0, G1):
            a(f"v_add_f32_dpp v{r}, v{r}, v{r} {dpp}")
    for op in (f"v_mul_f32 v%d, {f32(-LOG2E)}, v%d", "v_exp_f32 v%d, v%d", "v_add_f32 v%d, 1.0, v%d", "v_rcp_f32 v%d, v%d"):
        for r in (G0, G1):
            a(op % (r, r))
    a(f"""
    s_lshl_b32 s{t0}, s{QP}, 6
    s_lshl_b32 s{t4}, s{HD}, 1
    s_add_u32 s{t0}, s{t0}, s{t4}
    s_lshl_b32 s{t0}, s{t0}, 2
    s_add_u32 s{t0}, s{t0}, {GO}
    v_mov_b32 v1, 0
    s_mov_b32 exec_lo, 0
    s_mov_b32 exec_hi, 0x80000000
    buffer_store_dwordx2 {vr(G0,2)}, v1, {sr(SWS)}, s{t0} offen sc1
    s_mov_b64 exec, -1
    """)
    vm.issue("gst")

    S = 64
    NM = 112
    CD = 144
    O = 28
    P = 2
    M = 26
    MT = 10
    units = []
    for i in range(9, -1, -1):
        for u in (1, 0):
            rel = i - u
            if rel < 0 or rel > 8:
                continue
            units.append((u, i, "d" if rel == 8 else ("f" if rel == 0 else "n")))
    nU = len(units)
    switch = {3: 0, 7: 1, 11: 2, 15: 3}

    def smfma(n, cfun, blocks):
        u, i, kind = units[n]
        if n in switch:
            lab[0] += 1
            a(f"s_cmp_eq_u32 s{QP}, {switch[n]}")
            a(f"s_cbranch_scc0 SW{lab[0]}")
            for b in blocks:
                for j in range(8):
                    a(f"v_pk_mov_b32 {vr(b+2*j,2)}, {vr(MT,2)}, {vr(MT,2)}")
            a.label(f"SW{lab[0]}")
        a(f"v_mfma_f32_32x32x16_bf16 {vr(S+16*(n%3),16)}, {ar(KA+4*i,4)}, {vr(QFR+4*u,4)}, {cfun(u, kind)}")

    def c1(u, kind):
        return {"n": vr(Z, 16), "d": vr(MD, 16), "f": vr(MF, 16)}[kind]

    def act_publish():
        vm.wait("actst")
        a(f"""
        s_lshl_b32 s{t0}, s{TB}, 4
        s_add_u32 s{t0}, s{t0}, s{C}
        s_lshl_b32 s{t0}, s{t0}, 2
        s_add_u32 s{t0}, s{t0}, {FACT}
        """)
        publish(f"s{t0}", MT + 2, MT + 3)

    a(f"""
    v_mov_b32 v{MT}, {f32(NEG)}
    v_mov_b32 v{MT+1}, {f32(NEG)}
    v_mov_b32 v{M}, {f32(NEG)}
    v_mov_b32 v{M+1}, {f32(NEG)}
    s_waitcnt lgkmcnt(0)
    s_barrier
    """)
    vm.wait(("K", units[0][1]))
    stamp(7)
    smfma(0, c1, [Z])
    vm.wait(("K", units[1][1]))
    smfma(1, c1, [Z])
    for n in range(nU):
        if n + 2 < nU:
            vm.wait(("K", units[n + 2][1]))
            smfma(n + 2, c1, [Z])
        u = units[n][0]
        b = S + 16 * (n % 3)
        for j in range(8):
            a(f"v_max3_f32 v{M+u}, v{b+2*j}, v{b+2*j+1}, v{M+u}")
    for u in range(2):
        a(f"v_mov_b32 v{MT+2+u}, v{M+u}")
    for u in range(2):
        a(f"v_permlane32_swap_b32 v{M+u}, v{MT+2+u}")
    for u in range(2):
        a(f"v_max_f32 v{M+u}, v{M+u}, v{MT+2+u}")
    for u in range(2):
        a(f"v_sub_f32 v{NM+16*u}, 0, v{M+u}")
        a(f"v_sub_f32 v{NM+16*u+1}, 0, v{M+u}")
    for u in (1, 0):
        for j in range(8):
            a(f"v_pk_add_f32 {vr(CD+32*u+2*j,2)}, {vr(MD+2*j,2)}, {vr(NM+16*u,2)}")
        for j in range(1, 8):
            a(f"v_pk_mov_b32 {vr(NM+16*u+2*j,2)}, {vr(NM+16*u,2)}, {vr(NM+16*u,2)}")
    for u in range(2):
        for j in range(8):
            a(f"v_pk_add_f32 {vr(CD+32*u+16+2*j,2)}, {vr(MF+2*j,2)}, {vr(NM+16*u,2)}")

    def c2(u, kind):
        return {"n": vr(NM + 16 * u, 16), "d": vr(CD + 32 * u, 16), "f": vr(CD + 32 * u + 16, 16)}[kind]

    act_publish()
    stamp(8)
    NMB = [NM, NM + 16]
    smfma(0, c2, NMB)
    smfma(1, c2, NMB)
    ACTFLAG_LOAD = f"buffer_load_dword v{MT+5}, v{MT+4}, {sr(SWS)}, s{t1} offen sc1"

    def actflag_issue():
        a(f"""
        v_and_b32 v{MT+4}, 31, v0
        v_lshlrev_b32 v{MT+4}, 2, v{MT+4}
        s_lshl_b32 s{t1}, s{RB}, 7
        s_add_u32 s{t1}, s{t1}, {FACT}
        {ACTFLAG_LOAD}
        """)
        vm.issue("actflag")

    def act_pf():
        vm.wait("actflag")
        a(f"""
        s_lshl_b32 s{t0}, s{CT}, 2
        s_add_u32 s{t0}, s{t0}, s{WV}
        s_mul_i32 s{t0}, s{t0}, {43*128}
        s_mul_i32 s{t2}, s{RB}, {2*86*1024}
        s_add_u32 s{t0}, s{t0}, s{t2}
        s_add_u32 s{t0}, s{t0}, {AF}
        v_cmp_eq_u32 vcc, 1, v{MT+5}
        v_lshlrev_b32 v{MT+6}, 7, v0
        v_min_u32 v{MT+6}, {42*128}, v{MT+6}
        s_cmp_eq_u64 vcc, -1
        s_cselect_b32 s{t0}, s{t0}, {BIG}
        buffer_load_dword v{MT+7}, v{MT+6}, {sr(SWS)}, s{t0} offen sc1
        """)
        vm.issue("actpf")

    abg = {}
    W3START = int(OPT.get("w3start", 4))
    AFL = int(OPT.get("afl", 24))
    for s_ in range(NSL):
        abg.setdefault(W3START + s_ + (3 if W3START + s_ >= AFL else 0), []).append(w3_dma(s_))
    abg.setdefault(AFL, []).append(actflag_issue)
    abg.setdefault(AFL + 3, []).insert(0, act_pf)
    firstpv = {0: True, 1: True}

    def pv(n, t):
        u, i, kind = units[n]
        vm.wait(("V", i))
        c = "0" if firstpv[u] else vr(O + 16 * u, 16)
        firstpv[u] = False
        a(f"v_mfma_f32_32x32x16_bf16 {vr(O+16*u,16)}, {ar(VA+8*i+4*t,4)}, {vr(P+4*t,4)}, {c}")

    for n in range(nU):
        b = S + 16 * (n % 3)

        def ex(j):
            a(f"v_exp_f32 v{b+j}, v{b+j}")
        ex(0); ex(1)
        if n > 0:
            pv(n - 1, 1)
        for j in range(2, 6):
            ex(j)
        if n + 2 < nU:
            smfma(n + 2, c2, NMB)
        ex(6); ex(7)
        for f in abg.pop(2 * n, []):
            f()
        for j in range(4):
            a(f"v_cvt_pk_bf16_f32 v{P+j}, v{b+2*j}, v{b+2*j+1}")
        ex(8); ex(9)
        pv(n, 0)
        for j in range(10, 16):
            ex(j)
        for f in abg.pop(2 * n + 1, []):
            f()
        for j in range(4):
            a(f"v_cvt_pk_bf16_f32 v{P+4+j}, v{b+8+2*j}, v{b+8+2*j+1}")
    pv(nU - 1, 1)
    assert not abg, abg.keys()
    a(f"""
    s_lshl_b32 s{t0}, s{QP}, 16
    s_lshl_b32 s{t2}, s{HD}, 10
    s_add_u32 s{t0}, s{t0}, s{t2}
    s_add_u32 s{t0}, s{t0}, {OF}
    s_add_u32 s{t2}, s{t0}, 32768
    """)
    for u in (1, 0):
        a(f"v_rcp_f32 v{M+u}, v{O+16*u+8}")
        for j in range(8):
            a(f"v_mul_f32 v{O+16*u+j}, v{O+16*u+j}, v{M+u}")
        for j in range(4):
            a(f"v_cvt_pk_bf16_f32 v{P+4*u+j}, v{O+16*u+2*j}, v{O+16*u+2*j+1}")
        a(f"buffer_store_dwordx4 {vr(P+4*u,4)}, v{L16}, {sr(SWS)}, s{t2 if u else t0} offen sc1")
        vm.issue("ost")
    stamp(9)

    VA1, VO1 = 18, 19
    VWA = 20
    G = 22
    WF = 28
    ACB, ACA = 64, 128
    EE = 192
    T3 = 200
    a(f"""
    v_add_u32 v{VA1}, {86*1024}, v{L16}
    v_add_u32 v{VO1}, {32*1024}, v{L16}
    v_lshrrev_b32 v{T3}, 5, v0
    v_lshlrev_b32 v{VWA}, 9, v{T3}
    v_bfe_u32 v{T3}, v0, 2, 2
    v_lshl_add_u32 v{VWA}, v{T3}, 7, v{VWA}
    v_bfe_u32 v{T3}, v0, 3, 1
    v_lshl_add_u32 v{VWA}, v{T3}, 6, v{VWA}
    v_bfe_u32 v{T3}, v0, 4, 1
    v_lshl_add_u32 v{VWA}, v{T3}, 5, v{VWA}
    v_and_b32 v{T3}, 3, v0
    v_lshl_add_u32 v{VWA}, v{T3}, 3, v{VWA}
    v_add_u32 v{VWA}, s{L3}, v{VWA}
    v_xor_b32 v{VWA+1}, 64, v{VWA}
    s_mul_i32 s{t3}, s{RB}, {2*86}
    s_add_u32 s{t3}, s{t3}, s{BST}
    s_lshl_b32 s{t3}, s{t3}, 10
    s_add_u32 s{t3}, s{t3}, {AF}
    """)
    spin_until(MT + 5, ACTFLAG_LOAD)
    stamp(10)

    def areg(st):
        return 8 * (st % 16) if st < 22 else 128 + 8 * (st - 22)

    def aload(st):
        r = areg(st)
        if st < 22:
            a(f"s_add_u32 s{t0}, s{t3}, {st*1024}")
            if st == 21:
                a(f"s_cmp_ge_u32 s{WV}, 2")
                a(f"s_cselect_b32 s{t0}, {BIG}, s{t0}")
            a(f"buffer_load_dwordx4 {ar(r,4)}, v{L16}, {sr(SWS)}, s{t0} offen sc1")
            a(f"buffer_load_dwordx4 {ar(r+4,4)}, v{VA1}, {sr(SWS)}, s{t0} offen sc1")
        else:
            a(f"s_add_u32 s{t0}, s{t2}, {(st-22)*1024}")
            a(f"buffer_load_dwordx4 {ar(r,4)}, v{L16}, {sr(SWS)}, s{t0} offen sc1")
            a(f"buffer_load_dwordx4 {ar(r+4,4)}, v{VO1}, {sr(SWS)}, s{t0} offen sc1")
        vm.issue(("X", st))
        vm.issue(("X", st))

    def wreads(st):
        slot = st % NSL
        vm.wait(("W3", st))
        for nb in range(2):
            for j in range(2):
                a(f"ds_read_b64_tr_b16 {vr(WF+8*(st%3)+4*nb+2*j,2)}, v{VWA+nb} offset:{slot*2048+j*1024}")
                lg.issue(("W", st))

    def o_publish():
        vm.wait("ost")
        a(f"""
        s_lshl_b32 s{t0}, s{QP}, 5
        s_add_u32 s{t0}, s{t0}, s{HD}
        s_lshl_b32 s{t0}, s{t0}, 2
        s_add_u32 s{t0}, s{t0}, {FO}
        """)
        publish(f"s{t0}", T3, T3 + 1)

    OFLAG_LOAD = f"buffer_load_dword v{T3+3}, v{MT+4}, {sr(SWS)}, s{t1} offen sc1"

    def oflag_issue():
        a(f"""
        s_lshl_b32 s{t1}, s{RB}, 7
        s_add_u32 s{t1}, s{t1}, {FO}
        {OFLAG_LOAD}
        """)
        vm.issue("oflag")

    def o_check():
        vm.wait("oflag")
        spin_until(T3 + 3, OFLAG_LOAD)
        stamp(11)
        a(f"""
        s_lshl_b32 s{t2}, s{RB}, 16
        s_lshl_b32 s{t0}, s{WV}, 13
        s_add_u32 s{t2}, s{t2}, s{t0}
        s_add_u32 s{t2}, s{t2}, {OF}
        v_and_b32 v{T3+4}, 7, v0
        v_lshlrev_b32 v{T3+4}, 7, v{T3+4}
        v_bfe_u32 v{T3+5}, v0, 3, 1
        v_lshl_add_u32 v{T3+4}, v{T3+5}, 15, v{T3+4}
        s_lshl_b32 s{t0}, s{CT}, 10
        s_add_u32 s{t0}, s{t0}, s{t2}
        buffer_load_dword v{T3+5}, v{T3+4}, {sr(SWS)}, s{t0} offen sc1
        s_lshl_b32 s{t0}, s{RB}, 8
        s_add_u32 s{t0}, s{t0}, {GO}
        buffer_load_dword v{G}, v{MT+4}, {sr(SWS)}, s{t0} offen sc1
        buffer_load_dword v{G+1}, v{MT+4}, {sr(SWS)}, s{t0} offen offset:128 sc1
        """)
        vm.issue("opf")
        vm.issue("g")
        vm.issue("g")

    LX = int(OPT.get("lx", 5))
    OFI = int(OPT.get("ofi", 15))
    OCK = int(OPT.get("ock", 17))
    for st in range(LX):
        aload(st)
    wreads(0)
    wreads(1)
    o_publish()
    nexta = LX
    for st in range(30):
        vm.wait(("X", st))
        lg.wait(("W", st))
        accb = ACB if st < 22 else ACA
        first = st in (0, 22)
        k = 0
        for nb in range(2):
            for tb in range(2):
                acc = accb + 16 * (2 * nb + tb)
                c = "0" if first else vr(acc, 16)
                a(f"v_mfma_f32_32x32x16_bf16 {vr(acc,16)}, {vr(WF+8*(st%3)+4*nb,4)}, {ar(areg(st)+4*tb,4)}, {c}")
                if k == 0 and st + 2 < 30:
                    wreads(st + 2)
                if k == 1:
                    lim = 22 if st < OCK else 30
                    if nexta < lim:
                        aload(nexta)
                        nexta += 1
                    if st > OCK and nexta < min(30, st + LX + 2):
                        aload(nexta)
                        nexta += 1
                if k == 2 and st + NSL < 30:
                    w3_dma(st + NSL)()
                k += 1
        if st == OFI:
            oflag_issue()
        if st == OCK - 1:
            o_check()
    assert nexta == 30
    stamp(12)
    vm.wait("g")
    a(f"""
    v_sub_f32 v{G+2}, 1.0, v{G}
    v_sub_f32 v{G+3}, 1.0, v{G+1}
    """)
    srd(SO, POUT, 2048 * 1024)
    for tl in range(4):
        for i in range(16):
            a(f"v_mul_f32 v{ACB+16*tl+i}, v{ACB+16*tl+i}, v{G+2+(tl&1)}")
    for tl in range(4):
        for i in range(16):
            a(f"v_fmac_f32 v{ACB+16*tl+i}, v{ACA+16*tl+i}, v{G+(tl&1)}")
    a("s_barrier")
    a(f"""
    s_lshl_b32 s{t0}, s{WV}, 12
    v_add_u32 v{T3}, s{t0}, v{L16}
    s_lshl_b32 s{t0}, s{WV}, 14
    v_add_u32 v{T3+1}, s{t0}, v{L16}
    """)
    for tl in range(4):
        for qd in range(4):
            a(f"ds_write_b128 v{T3}, {vr(ACB+16*tl+4*qd,4)} offset:{tl*16384+qd*1024}")
    a("s_waitcnt lgkmcnt(0)")
    a("s_barrier")
    for w in range(4):
        for qd in range(4):
            a(f"ds_read_b128 {vr(ACB+16*w+4*qd,4)}, v{T3+1} offset:{w*4096+qd*1024}")
    a(f"""
    s_and_b32 s{t0}, s{WV}, 1
    s_lshl_b32 s{t0}, s{t0}, 15
    s_lshl_b32 s{t1}, s{RB}, 16
    s_add_u32 s{t0}, s{t0}, s{t1}
    s_lshr_b32 s{t1}, s{WV}, 1
    s_lshl_b32 s{t1}, s{t1}, 6
    s_add_u32 s{t0}, s{t0}, s{t1}
    s_lshl_b32 s{t1}, s{CT}, 7
    s_add_u32 s{t0}, s{t0}, s{t1}
    v_and_b32 v{T3+2}, 31, v0
    v_lshlrev_b32 v{T3+2}, 10, v{T3+2}
    v_lshrrev_b32 v{T3+3}, 5, v0
    v_lshl_add_u32 v{T3+2}, v{T3+3}, 4, v{T3+2}
    s_waitcnt lgkmcnt(0)
    """)
    A_ = ACB
    for i in range(8):
        a(f"v_pk_add_f32 {vr(A_+2*i,2)}, {vr(A_+2*i,2)}, {vr(A_+16+2*i,2)}")
        a(f"v_pk_add_f32 {vr(A_+32+2*i,2)}, {vr(A_+32+2*i,2)}, {vr(A_+48+2*i,2)}")
    for i in range(8):
        a(f"v_pk_add_f32 {vr(A_+2*i,2)}, {vr(A_+2*i,2)}, {vr(A_+32+2*i,2)}")
    for i in range(8):
        a(f"v_cvt_pk_bf16_f32 v{EE+i}, v{A_+2*i}, v{A_+2*i+1}")
    for p in range(2):
        a(f"v_permlane32_swap_b32 v{EE+4*p}, v{EE+4*p+2}")
        a(f"v_permlane32_swap_b32 v{EE+4*p+1}, v{EE+4*p+3}")
        a(f"buffer_store_dwordx4 {vr(EE+4*p,4)}, v{T3+2}, {sr(SO)}, s{t0} offen offset:{32*p}")
    if STAMPS:
        a("s_waitcnt vmcnt(0)")
        stamp(14)
        a(f"""
        s_mov_b32 s{ST0+26}, 0
        s_mov_b32 s{ST0+27}, 0
        s_waitcnt lgkmcnt(0)
        s_lshl_b32 s{t0}, s2, 2
        s_add_u32 s{t0}, s{t0}, s{WV}
        s_lshl_b32 s{t0}, s{t0}, 8
        s_add_u32 s{t0}, s{t0}, {24 << 20}
        v_mov_b32 v1, s{t0}
        s_mov_b64 exec, 1
        """)
        for i in range(15):
            a(f"v_mov_b32 v2, s{ST0+2*i}")
            a(f"v_mov_b32 v3, s{ST0+2*i+1}")
            a(f"global_store_dwordx2 v1, v[2:3], s[24:25] offset:{8*i}")
    a.label("END")
    a("s_endpgm")


def main():
    ref = open(f"cdna_kernels/{NAME}.s.ref").read().split("\n")
    hdr = [l for l in ref if l.startswith(";") and "@launch" not in l]
    a = Asm()
    a.raw("\n".join(hdr))
    a.raw("""; @launch grid=(256,1,1) block=(256,1,1) lds=163840
.amdgcn_target "amdgcn-amd-amdhsa--gfx950"
.text""")
    gen(a)
    txt = a.finalize(True)
    txt += f""".section .rodata,"a"
.p2align 6
.amdhsa_kernel {NAME}_kernel
  .amdhsa_next_free_vgpr 512
  .amdhsa_next_free_sgpr 102
  .amdhsa_accum_offset 256
  .amdhsa_group_segment_fixed_size 0
  .amdhsa_kernarg_size 88
  .amdhsa_user_sgpr_count 2
  .amdhsa_user_sgpr_kernarg_segment_ptr 1
  .amdhsa_system_sgpr_workgroup_id_x 1
.end_amdhsa_kernel
"""
    out = sys.argv[1] if len(sys.argv) > 1 else f"cdna_kernels/{NAME}.s"
    open(out, "w").write(txt)


main()
```
